```python
import torch

def _softmax(x, axis=-1):
    return torch.softmax(x, dim=axis)

def _gelu(x):
    return torch.nn.functional.gelu(x, approximate='tanh')

def _silu(x):
    return torch.nn.functional.silu(x)

def _sigmoid(x):
    return torch.sigmoid(x)

def _layernorm(x, axis=-1, eps=1e-05):
    m = x.mean(dim=axis, keepdim=True)
    v = x.var(dim=axis, keepdim=True, unbiased=False)
    return (x - m) / torch.sqrt(v + eps)

def _scatter_add(tgt, idx, src, axis=0):
    return tgt.clone().index_add_(axis, idx, src)

def _segment_sum(src, seg, n):
    out = torch.zeros((n,) + src.shape[1:], dtype=src.dtype)
    return out.index_add_(0, seg, src)

def _pad(x, pw):
    flat = tuple((v for pair in reversed(pw) for v in pair))
    return torch.nn.functional.pad(x, flat)
kernel_name = 'adaLN_cond__grouped_kv_mqa__glu_gated_geglu__prompt'

def setup_inputs():

    _w = lambda a: (lambda t: t.to(torch.bfloat16) if t.is_floating_point() else t)(torch.as_tensor(a))

    def _A_setup():
        B, S, D, H = (1, 2048, 640, 32)
        Dh = D // H
        return {'x': _w((lambda *s: torch.randn(*s, dtype=torch.bfloat16) * 0.05)(B, S, D)), 'wq': _w((lambda *s: torch.randn(*s, dtype=torch.bfloat16) * 0.05)(D, H * Dh)), 'wk': _w((lambda *s: torch.randn(*s, dtype=torch.bfloat16) * 0.05)(D, Dh)), 'wv': _w((lambda *s: torch.randn(*s, dtype=torch.bfloat16) * 0.05)(D, Dh)), 'wo': _w((lambda *s: torch.randn(*s, dtype=torch.bfloat16) * 0.05)(H * Dh, D))}
    _A_in = _A_setup()

    def _B_setup():
        B, S, Dm, Df = (1, 2048, 640, 1536)
        return {'x': _w((lambda *s: torch.randn(*s, dtype=torch.bfloat16) * 0.05)(B, S, Dm)), 'w_gate': _w((lambda *s: torch.randn(*s, dtype=torch.bfloat16) * 0.8)(Dm, Df) * Dm ** (-0.5)), 'w_up': _w((lambda *s: torch.randn(*s, dtype=torch.bfloat16) * 0.8)(Dm, Df) * Dm ** (-0.5)), 'w_down': _w((lambda *s: torch.randn(*s, dtype=torch.bfloat16) * 0.8)(Df, Dm) * Df ** (-0.5))}
    _B_in = _B_setup()
    return {'A_x': _A_in['x'], 'A_wq': _A_in['wq'], 'A_wk': _A_in['wk'], 'A_wv': _A_in['wv'], 'A_wo': _A_in['wo'], 'B_x': _B_in['x'], 'B_w_gate': _B_in['w_gate'], 'B_w_up': _B_in['w_up'], 'B_w_down': _B_in['w_down'], 'c': _w((lambda *s: torch.randn(*s, dtype=torch.bfloat16) * 0.1)(1, 640) * 8.0), 'w_mod': _w((lambda *s: torch.randn(*s, dtype=torch.bfloat16) * 0.1)(640, 6 * 640) * 640 ** (-0.5) * 8.0)}

def reference(A_x, A_wq, A_wk, A_wv, A_wo, B_x, B_w_gate, B_w_up, B_w_down, c, w_mod):

    def _A_ref(x, wq, wk, wv, wo):
        B, S, D = x.shape
        H = 32
        Dh = D // H
        q = (lambda x, *d: x.permute(*d))((x @ wq).reshape(B, S, H, Dh), 0, 2, 1, 3)
        k = x @ wk
        v = x @ wv
        scores = torch.einsum('bhqd,bkd->bhqk', q, k) * Dh ** (-0.5)
        p = _softmax(scores, axis=-1)
        o = torch.einsum('bhqk,bkd->bhqd', p, v)
        return (lambda x, *d: x.permute(*d))(o, 0, 2, 1, 3).reshape(B, S, H * Dh) @ wo

    def _B_ref(x, w_gate, w_up, w_down):
        g = torch.einsum('bsd,df->bsf', x, w_gate)
        u = torch.einsum('bsd,df->bsf', x, w_up)
        h = _gelu(g) * u
        return torch.einsum('bsf,fd->bsd', h, w_down)
    x = A_x
    mod = (_silu(c) @ w_mod).reshape(c.shape[0], 6, 1, -1)
    sa, ca, ga, sb, cb, gb = (mod[:, 0].clone(), mod[:, 1].clone(), mod[:, 2].clone(), mod[:, 3].clone(), mod[:, 4].clone(), mod[:, 5].clone())
    h = _layernorm(x, axis=-1) * (1 + ca) + sa
    x = x + ga * _A_ref(h, A_wq, A_wk, A_wv, A_wo)
    h = _layernorm(x, axis=-1) * (1 + cb) + sb
    x = x + gb * _B_ref(h, B_w_gate, B_w_up, B_w_down)
    return x
```

```python
import re

REG_RE = re.compile(r"^(-|\|)?(abs\()?([vas])(\d+|\[(\d+):(\d+)\])\)?\|?$")


def regs_of(tok):
    tok = tok.strip()
    if tok == "vcc":
        return {("s", "vcc")}
    if tok == "exec":
        return {("s", "exec")}
    if tok == "m0":
        return {("s", "m0")}
    m = REG_RE.match(tok)
    if not m:
        return set()
    f = m.group(3)
    if m.group(5) is not None:
        return {(f, i) for i in range(int(m.group(5)), int(m.group(6)) + 1)}
    return {(f, int(m.group(4)))}


TRANS = ("v_exp_f32", "v_log_f32", "v_rcp_f32", "v_rsq_f32", "v_sqrt_f32", "v_sin_f32", "v_cos_f32")


class Ins:
    __slots__ = ("text", "op", "ops", "kind", "w", "r", "passes", "srcC", "srcAB", "label", "target", "states", "sdata")

    def __init__(self, text):
        self.text = text
        self.label = None
        self.target = None
        self.passes = 0
        self.srcC = set()
        self.srcAB = set()
        self.sdata = set()
        self.states = 1
        t = text.split(";")[0].strip()
        if t.endswith(":"):
            self.kind = "label"
            self.label = t[:-1]
            self.op = ""
            self.ops = []
            self.w = set()
            self.r = set()
            self.states = 0
            return
        if t.startswith(".") or not t:
            self.kind = "dir"
            self.op = ""
            self.ops = []
            self.w = set()
            self.r = set()
            self.states = 0
            return
        parts = t.split(None, 1)
        self.op = op = parts[0]
        rest = parts[1] if len(parts) > 1 else ""
        ops = []
        depth = 0
        cur = ""
        for ch in rest:
            if ch in "[(":
                depth += 1
            if ch in "])":
                depth -= 1
            if ch == "," and depth == 0:
                ops.append(cur.strip())
                cur = ""
            else:
                cur += ch
        if cur.strip():
            ops.append(cur.strip())
        if ops:
            last = ops[-1].split()
            ops[-1] = last[0]
            mods = last[1:]
        else:
            mods = []
        self.ops = ops
        R = [regs_of(o) for o in ops]
        allr = set().union(*R) if R else set()
        self.w = set()
        self.r = set()
        if op.startswith("v_mfma"):
            self.kind = "mfma"
            self.passes = 8 if "32x32" in op else 4
            self.w = R[0]
            self.srcAB = R[1] | R[2]
            self.srcC = R[3]
            self.r = self.srcAB | self.srcC
        elif op.startswith("v_"):
            self.kind = "valu"
            if op.startswith("v_cmp"):
                self.w = R[0]
                self.r = set().union(*R[1:])
            elif "permlane" in op and "swap" in op:
                self.w = R[0] | R[1]
                self.r = R[0] | R[1]
            elif "_co_" in op:
                self.w = R[0] | R[1]
                self.r = set().union(*R[2:])
            else:
                self.w = R[0]
                self.r = set().union(*R[1:]) if len(R) > 1 else set()
                if op.startswith(("v_fmac", "v_pk_fmac", "v_dot2c")) or "_dpp" in op:
                    self.r |= R[0]
                if op.startswith("v_cndmask") and len(ops) == 3:
                    self.r |= {("s", "vcc")}
        elif op.startswith(("buffer_", "global_")):
            self.kind = "vmem"
            is_lds = "lds" in mods
            if "load" in op and not is_lds:
                self.w = R[0]
                self.r = set().union(*R[1:])
            else:
                self.r = allr
                if is_lds:
                    self.r |= {("s", "m0")}
                if "store" in op and op.endswith(("x3", "x4")):
                    self.sdata = R[0] if op.startswith("buffer_") else R[1]
        elif op.startswith("ds_"):
            self.kind = "ds"
            if op.startswith("ds_read") or "permute" in op or "swizzle" in op:
                self.w = R[0]
                self.r = set().union(*R[1:])
            else:
                self.r = allr
        elif op.startswith("s_"):
            self.kind = "salu"
            if op == "s_nop":
                self.states = int(ops[0], 0) + 1
            elif op.startswith(("s_cbranch", "s_branch")):
                self.target = ops[0]
            elif op.startswith(("s_cmp", "s_waitcnt", "s_barrier", "s_endpgm", "s_sleep", "s_setprio", "s_bitcmp")):
                self.r = allr
            else:
                self.w = R[0] if R else set()
                self.r = set().union(*R[1:]) if len(R) > 1 else set()
                if "saveexec" in op:
                    self.w |= {("s", "exec")}
        else:
            raise ValueError("unknown instruction: " + text)


def vg(s):
    return {x for x in s if x[0] in "va"}


def sg(s):
    return {x for x in s if x[0] == "s"}


def need_states(p, c):
    n = 0
    if p.kind == "valu":
        wv = vg(p.w)
        ws = sg(p.w)
        if c.kind == "mfma" and wv & c.r:
            n = max(n, 2)
        if c.kind == "valu":
            if p.op in TRANS and c.op not in TRANS and wv & c.r:
                n = max(n, 1)
            if ("_dpp" in c.op or "permlane" in c.op) and wv & c.r:
                n = max(n, 2)
            if c.op.startswith(("v_readfirstlane", "v_readlane")) and wv & c.r:
                n = max(n, 1)
            if ws & c.r:
                n = max(n, 2)
        if c.kind == "vmem" and ws & c.r:
            n = max(n, 5)
        if ("s", "exec") in ws:
            n = max(n, 5 if c.kind in ("valu", "mfma") else 0)
    elif p.kind == "mfma":
        big = p.passes == 8
        if c.kind == "mfma":
            if p.w & c.srcC:
                same = p.w == c.srcC and p.passes == c.passes
                if not same:
                    n = max(n, 10 if big else 6)
            if p.w & c.srcAB:
                n = max(n, 12 if big else 8)
            if p.w & c.w and not (p.w == c.srcC and p.passes == c.passes):
                n = max(n, 10 if big else 6)
        elif c.kind in ("valu", "vmem", "ds"):
            if p.w & (c.r | c.w):
                n = max(n, 12 if big else 8)
            if c.kind == "valu" and p.srcC & vg(c.w):
                n = max(n, 7 if big else 3)
    elif p.kind == "salu":
        if ("s", "m0") in p.w and c.kind == "vmem" and ("s", "m0") in c.r:
            n = max(n, 1)
    elif p.kind == "vmem":
        if p.sdata and c.kind in ("valu", "mfma") and p.sdata & c.w:
            n = max(n, 2)
        elif p.sdata and c.kind in ("vmem", "ds") and p.sdata & c.w:
            n = max(n, 1)
    return n


MAXWIN = 12


class Asm:
    def __init__(self):
        self.ins = []
        self.vm = []
        self.lg = []
        self.uid = 0

    def __call__(self, text, tag=None):
        for line in text.split("\n"):
            line = line.strip()
            if not line:
                continue
            i = Ins(line)
            self.ins.append(i)
            if i.kind == "vmem":
                self.vm.append(tag)
                assert len(self.vm) <= 63, "more than 63 vector-memory operations in flight: " + line
            elif i.kind == "ds":
                self.lg.append(tag)
        return self

    def label(self, base):
        self.uid += 1
        return f"L_{base}_{self.uid}"

    def wait_vm(self, tag=None):
        if tag is None:
            n = 0
        else:
            tags = tag if isinstance(tag, (list, tuple, set)) else [tag]
            idx = [k for k, t in enumerate(self.vm) if t in tags]
            if not idx:
                return
            n = len(self.vm) - 1 - idx[-1]
        assert n <= 63, n
        self(f"s_waitcnt vmcnt({n})")
        self.vm = self.vm[len(self.vm) - n:] if n else []

    def room(self, n):
        keep = 63 - n
        if len(self.vm) > keep:
            self(f"s_waitcnt vmcnt({keep})")
            self.vm = self.vm[len(self.vm) - keep:]

    def wait_lg(self, tag=None):
        if tag is None:
            n = 0
        else:
            tags = tag if isinstance(tag, (list, tuple, set)) else [tag]
            idx = [k for k, t in enumerate(self.lg) if t in tags]
            if not idx:
                return
            n = len(self.lg) - 1 - idx[-1]
        n = min(n, 15)
        self(f"s_waitcnt lgkmcnt({n})")
        self.lg = self.lg[len(self.lg) - n:] if n else []

    def finalize(self):
        total = 0
        while True:
            ins = self.ins
            labels = {x.label: k for k, x in enumerate(ins) if x.kind == "label"}
            preds = [[] for _ in ins]
            for k, x in enumerate(ins):
                if x.target is not None:
                    preds[labels[x.target]].append(k)
                fall = not (x.op in ("s_branch", "s_endpgm"))
                if fall and k + 1 < len(ins):
                    preds[k + 1].append(k)
            fix = {}
            for k, c in enumerate(ins):
                if c.kind in ("label", "dir", "salu"):
                    continue
                worst = 0
                stack = [(p, 0) for p in preds[k]]
                seen = {}
                while stack:
                    p, dist = stack.pop()
                    if dist >= MAXWIN or seen.get(p, 99) <= dist:
                        continue
                    seen[p] = dist
                    x = ins[p]
                    nd = need_states(x, c)
                    if nd > dist:
                        worst = max(worst, nd - dist)
                    for q in preds[p]:
                        stack.append((q, dist + x.states))
                if worst:
                    fix[k] = worst
            if not fix:
                return total
            first = min(fix)
            out = []
            skip_until = -1
            for k, x in enumerate(ins):
                if k in fix and k > skip_until:
                    out.append(Ins(f"s_nop {fix[k]-1}"))
                    total += fix[k]
                    skip_until = k + MAXWIN
                out.append(x)
            self.ins = out

    def text(self):
        return "\n".join(x.text if x.kind in ("label", "dir") else "    " + x.text for x in self.ins) + "\n"
```

```python
WS_NONCE = 0x0
WS_FKV = 0x4000
WS_FO = 0xC000
WS_FZ = 0xD000
WS_FH = 0xE000
WS_FPREP = 0xF000
WS_FHX = 0x3000
WS_MODP = 0x10000
MODP_STRIDE = 3840 * 8
WS_UB = 0x40000
UB_STRIDE = 96 * 256
WS_KV = 0x90000
WS_STAMP = 0xC8000
WS_O = 0x100000
WS_Z = 0x400000
WS_ST = 0x700000
WS_H = 0x800000
WS_HX = 0xE80000
WS_WGU = 0x1200000
WS_WD = 0x1600000
WS_WO = 0x1800000
WS_BYTES = 0x1A00000
OOB = 0x7F000000

LDS_BYTES = 163840
A_SZ = 25600
B_BASE = 4 * A_SZ
B_SZ = 12864
STX = B_BASE + 4 * B_SZ
MSH = STX + 2048
VOTE = MSH + 1472
MP = MSH + 1536
assert MP + 5120 <= LDS_BYTES
OP = 0
QI = 98304
PS = QI + 10240
UBX = PS + 4 * 9216
assert UBX + 4096 <= STX
RP = 0
ZL = 61440
assert ZL + 81920 <= STX
```

```python
import sys
from asm import Asm
from layout import *

NAME = "adaLN_cond__grouped_kv_mqa__glu_gated_geglu__prompt_kernel"

SRD_WS, SRD_X, SRD_WQ, SRD_WK, SRD_WV, SRD_PD, SRD_WG, SRD_WU = (f"s[{b}:{b+3}]" for b in (32, 36, 40, 44, 48, 52, 56, 60))
SRD_C, SRD_WM, SRD_OUT = "s[68:71]", "s[72:75]", "s[76:79]"
W, G, J, P, NONCE, CTR = "s80", "s81", "s82", "s83", "s84", "s85"
S_KQ2, S_PDDST, S_SPIN = "s86", "s87", "s88"
T0, T1, T2, T3 = "s28", "s29", "s30", "s31"
T4, T5, T6, T7 = "s64", "s65", "s66", "s67"
SOFF = "s89"
M0_, M1_, M2_, M3_ = "s[90:91]", "s[92:93]", "s[94:95]", "s[96:97]"
SPIN_LIMIT = 400000
LOG2E = 1.4426950408889634


def f2u(x):
    import struct
    return struct.unpack("<I", struct.pack("<f", x))[0]


def hx(x):
    return f"0x{f2u(x):08x}"


def vr(b, n=4, f="v"):
    return f"{f}{b}" if n == 1 else f"{f}[{b}:{b+n-1}]"


def ar(b, n=4):
    return vr(b, n, "a")


class K(Asm):
    def __init__(self, cfg):
        super().__init__()
        self.cfg = cfg
        self.soff = None
        self.nstamp = 0

    def _off(self, off):
        if off < 4096:
            return "0", off
        if self.soff is None or not (self.soff <= off < self.soff + 4096):
            self(f"s_mov_b32 {SOFF}, {off}")
            self.soff = off
        return SOFF, off - self.soff

    def bld(self, dst, voff, srd, off=0, tag=None, fl="", w="dwordx4"):
        so, im = self._off(off)
        self(f"buffer_load_{w} {dst}, {voff}, {srd}, {so} offen offset:{im} {fl}", tag)

    def bst(self, src, voff, srd, off=0, tag=None, fl="", w="dwordx4"):
        so, im = self._off(off)
        self(f"buffer_store_{w} {src}, {voff}, {srd}, {so} offen offset:{im} {fl}", tag)

    def dma(self, voff, srd, off, ldsbase, ldsoff, tag=None, fl=""):
        if off and (self.soff != off):
            self(f"s_mov_b32 {SOFF}, {off}")
            self.soff = off
        self(f"s_add_u32 m0, {ldsbase}, {ldsoff}")
        self(f"buffer_load_dwordx4 {voff}, {srd}, {SOFF if off else 0} offen {fl} lds", tag)

    def forget(self):
        self.soff = None

    def stamp(self, name):
        if not self.cfg.get("stamps"):
            return
        k = self.nstamp
        self.nstamp += 1
        assert k < 12
        self.cfg.setdefault("stamp_names", []).append(name)
        self(f"s_memrealtime s[{4+2*k}:{5+2*k}]")

    def srd(self, srd, ptr, nbytes):
        b = int(srd[2:srd.index(":")])
        self(f"s_mov_b32 s{b}, s{ptr}\ns_mov_b32 s{b+1}, s{ptr+1}\ns_mov_b32 s{b+2}, {nbytes}\ns_mov_b32 s{b+3}, 0x20000")

    def poll(self, vaddr, vtmp, n=1):
        lp, ok = self.label("poll"), self.label("pollok")
        self(f"s_mov_b32 {S_SPIN}, {SPIN_LIMIT}")
        self(f"{lp}:")
        w = {1: "dword", 4: "dwordx4"}[n]
        self(f"buffer_load_{w} {vr(vtmp, n)}, {vaddr}, {SRD_WS}, 0 offen sc1")
        self(f"s_sub_u32 {S_SPIN}, {S_SPIN}, 1")
        self("s_cbranch_scc1 L_end")
        self("s_waitcnt vmcnt(0)")
        self.vm = []
        if n == 4:
            self(f"v_xor_b32 v{vtmp}, {NONCE}, v{vtmp}\nv_xor_b32 v{vtmp+1}, {NONCE}, v{vtmp+1}\nv_xor_b32 v{vtmp+2}, {NONCE}, v{vtmp+2}\nv_xor_b32 v{vtmp+3}, {NONCE}, v{vtmp+3}")
            self(f"v_or3_b32 v{vtmp}, v{vtmp}, v{vtmp+1}, v{vtmp+2}\nv_or_b32 v{vtmp}, v{vtmp}, v{vtmp+3}")
            self(f"v_cmp_ne_u32 vcc, 0, v{vtmp}")
        else:
            self(f"v_cmp_ne_u32 vcc, {NONCE}, v{vtmp}")
        self(f"s_cbranch_vccnz {lp}")
        self.forget()

    def flag(self, vaddr, vdata):
        self.wait_vm()
        self(f"v_mov_b32 v{vdata}, {NONCE}")
        self(f"buffer_store_dword v{vdata}, {vaddr}, {SRD_WS}, 0 offen sc1", "flag")


def prologue(a):
    a(f"""s_cmp_ge_u32 s2, 256
s_cbranch_scc1 L_end""")
    if a.cfg.get("stamps"):
        a("s_memrealtime s[98:99]")
    a(f"""s_load_dwordx16 s[4:19], s[0:1], 0
s_load_dwordx8 s[20:27], s[0:1], 64
s_load_dwordx2 s[28:29], s[0:1], 104
v_lshrrev_b32 v2, 6, v0
v_and_b32 v0, 63, v0
v_readfirstlane_b32 {W}, v2
v_lshlrev_b32 v1, 4, v0
s_and_b32 s3, s2, 7
s_lshr_b32 {T2}, s2, 3
s_lshr_b32 {T3}, {T2}, 3
s_lshl_b32 {G}, s3, 2
s_add_u32 {G}, {G}, {T3}
s_and_b32 {J}, {T2}, 7
s_lshl_b32 {P}, {G}, 3
s_add_u32 {P}, {P}, {J}""")
    a(f"""s_mul_i32 {T4}, {P}, 1093
s_lshr_b32 {T4}, {T4}, 16
s_mul_i32 {T5}, {T4}, 60
s_sub_u32 {T5}, {P}, {T5}
s_mul_i32 {T6}, {T4}, 160
s_mul_i32 {T7}, {W}, 40
s_add_u32 {T6}, {T6}, {T7}
v_lshrrev_b32 v2, 3, v0
v_add_u32 v2, {T6}, v2
v_lshlrev_b32 v3, 1, v2
v_mul_u32_u24 v4, 7680, v2
v_and_b32 v5, 7, v0
v_lshlrev_b32 v5, 4, v5
s_lshl_b32 {T6}, {T5}, 7
v_add3_u32 v4, v4, v5, {T6}""")
    a(f"""s_lshl_b32 {T6}, {P}, 3
v_and_b32 v5, 7, v0
v_add_u32 v5, {T6}, v5
v_mul_u32_u24 v5, 1280, v5
v_lshrrev_b32 v6, 4, v0
v_lshlrev_b32 v6, 4, v6
s_mul_i32 {T7}, {W}, 320
v_add3_u32 v5, v5, v6, {T7}""")
    for k in range(20):
        a(f"v_mov_b32 v{16+k}, 0")
    a("s_waitcnt lgkmcnt(0)")
    a.srd(SRD_C, 22, 1280)
    a.srd(SRD_WM, 24, 640 * 3840 * 2)
    for i in range(5):
        a.bld(f"v{8+i}", "v3", SRD_C, 16 * i, "c", w="ushort")
    for i in range(5):
        a.bld(vr(96 + 4 * i), "v4", SRD_WM, 61440 * i, "wm")
    a.srd(SRD_WS, 28, WS_BYTES)
    a(f"s_load_dword {CTR}, s[28:29], {WS_NONCE}")
    a.srd(SRD_X, 4, 2048 * 1280)
    a("s_mov_b32 exec_lo, 0x00ff00ff\ns_mov_b32 exec_hi, 0x00ff00ff")
    for ks in range(5):
        a.bld(vr(16 + 4 * ks), "v5", SRD_X, 64 * ks, "x")
    a("s_mov_b64 exec, -1")
    a.srd(SRD_WK, 8, 25600)
    a.srd(SRD_WV, 10, 25600)
    a.srd(SRD_WQ, 6, 640 * 1280)
    a(f"""s_mul_i32 {T6}, {W}, 6400
v_add_u32 v6, {T6}, v1
s_mul_i32 {T7}, {W}, {B_SZ}
s_add_u32 {T7}, {T7}, {B_BASE}""")
    for m, srd in enumerate((SRD_WK, SRD_WV)):
        for i in range(7):
            if i == 6:
                a("s_mov_b64 exec, 0xffff")
            a.dma("v6", srd, 1024 * i, T7, 6400 * m + 1024 * i, "wkv")
        a("s_mov_b64 exec, -1")
    for i in range(5):
        a(f"""v_add_u32 v6, {64*i}, v0
v_mul_u32_u24 v7, 6554, v6
v_lshrrev_b32 v7, 16, v7
v_mul_u32_u24 v13, 10, v7
v_sub_u32 v6, v6, v13
v_lshlrev_b32 v{126+i}, 4, v6
v_bfe_u32 v13, v7, 2, 2
v_lshlrev_b32 v13, 3, v13
v_lshrrev_b32 v14, 4, v7
v_lshl_add_u32 v13, v14, 2, v13
v_and_b32 v7, 3, v7
v_add_u32 v{121+i}, v13, v7""")
    a(f"""s_mul_i32 {T6}, {W}, {160*1280}
s_mul_i32 {T7}, {J}, 160
s_add_u32 {T6}, {T6}, {T7}""")
    for i in range(5):
        a(f"""v_mul_u32_u24 v6, 1280, v{121+i}
v_add3_u32 v{116+i}, v6, v{126+i}, {T6}""")
    wq_dma(a, 0, a.cfg["wq1"])
    a.srd(SRD_WG, 16, 640 * 3072)
    a.srd(SRD_WU, 18, 640 * 3072)
    a.srd(SRD_OUT, 26, 2048 * 1280)
    prep_addresses(a)
    if a.cfg.get("stamps"):
        a("s_waitcnt lgkmcnt(0)\ns_mov_b32 s100, s98")
    a.stamp("issued")


def wq_dma(a, lo, hi):
    if lo >= hi:
        return
    a(f"s_mul_i32 {T7}, {W}, {A_SZ}")
    for n in range(lo, hi):
        a.dma(f"v{116 + n % 5}", SRD_WQ, 40960 * (n // 5), T7, 1024 * n, "wq")


def prep_addresses(a):
    lwo, ldone = a.label("iswo"), a.label("pdd")
    a(f"""s_mul_i32 {T4}, {P}, 3
s_add_u32 {T4}, {T4}, {W}
s_cmp_eq_u32 {W}, 3
s_cselect_b32 {T4}, 1000, {T4}
s_cmp_ge_u32 {T4}, 384
s_cselect_b32 s52, s12, s20
s_cselect_b32 s53, s13, s21
s_mov_b32 s54, {1536*1280}
s_cselect_b32 s54, {640*1280}, s54
s_mov_b32 s55, 0x20000
s_cselect_b32 {T5}, 384, 0
s_sub_u32 {T5}, {T4}, {T5}
s_lshr_b32 {T6}, {T5}, 3
s_and_b32 {T5}, {T5}, 7
s_cmp_ge_u32 {T4}, 384
s_cbranch_scc1 {lwo}""")
    a(f"""s_mul_i32 {S_PDDST}, {T5}, 48
s_add_u32 {S_PDDST}, {S_PDDST}, {T6}
s_mul_i32 {S_PDDST}, {S_PDDST}, 5120
s_add_u32 {S_PDDST}, {S_PDDST}, {WS_WD}
s_lshl_b32 {T7}, {T6}, 5""")
    for i in range(5):
        k = f"v{121+i}"
        a(f"""v_and_b32 v6, 0x13, {k}
v_bfe_u32 v7, {k}, 3, 1
v_lshl_add_u32 v6, v7, 2, v6
v_bfe_u32 v7, {k}, 2, 1
v_lshl_add_u32 v6, v7, 3, v6
v_add_u32 {k}, {T7}, v6""")
    a(f"s_branch {ldone}")
    a(f"{lwo}:")
    a(f"""s_mul_i32 {S_PDDST}, {T5}, 20
s_add_u32 {S_PDDST}, {S_PDDST}, {T6}
s_mul_i32 {S_PDDST}, {S_PDDST}, 5120
s_add_u32 {S_PDDST}, {S_PDDST}, {WS_WO}
s_lshl_b32 {T7}, {T6}, 2""")
    for i in range(5):
        k = f"v{121+i}"
        a(f"""v_lshrrev_b32 v6, 3, {k}
v_add_u32 v6, {T7}, v6
v_mul_u32_u24 v7, 6554, v6
v_lshrrev_b32 v7, 16, v7
v_mul_u32_u24 v13, 10, v7
v_sub_u32 v6, v6, v13
v_and_b32 v13, 3, {k}
v_bfe_u32 v14, {k}, 2, 1
v_lshrrev_b32 v15, 1, v6
v_lshl_add_u32 v15, v7, 2, v15
v_mul_u32_u24 v15, 20, v15
v_and_b32 v36, 1, v6
v_lshl_add_u32 v15, v36, 2, v15
v_lshl_add_u32 v15, v14, 3, v15
v_subrev_u32 v36, 8, v6
v_lshl_add_u32 v36, v36, 1, v14
v_lshl_add_u32 v36, v7, 2, v36
v_mul_u32_u24 v36, 20, v36
v_add_u32 v36, 16, v36
v_cmp_gt_u32 vcc, 8, v6
v_cndmask_b32 v15, v36, v15, vcc
v_add_u32 {k}, v15, v13""")
    a(f"{ldone}:")
    a(f"""s_mul_i32 {T7}, {T5}, 160
s_cmp_ge_u32 {T4}, 544
s_cselect_b32 {T6}, {OOB}, 0
s_add_u32 {T7}, {T7}, {T6}
s_add_u32 {S_PDDST}, {S_PDDST}, {T6}""")
    for i in range(5):
        a(f"""v_mul_u32_u24 v6, 1280, v{121+i}
v_add3_u32 v6, v6, v{126+i}, {T7}
v_accvgpr_write_b32 a{224+i}, v6""")
    a(f"""s_mul_i32 {S_KQ2}, {P}, 2731
s_lshr_b32 {S_KQ2}, {S_KQ2}, 16
s_mul_i32 {T5}, {S_KQ2}, 24
s_sub_u32 {T5}, {P}, {T5}
s_lshl_b32 {T6}, {S_KQ2}, 2
s_add_u32 {T6}, {T6}, {W}
s_lshl_b32 {T6}, {T6}, 4
v_lshrrev_b32 v6, 3, v0
v_add_u32 v6, {T6}, v6
v_mul_u32_u24 v6, 3072, v6
v_and_b32 v7, 7, v0
v_lshlrev_b32 v7, 4, v7
s_lshl_b32 {T7}, {T5}, 7
v_add3_u32 v6, v6, v7, {T7}
v_accvgpr_write_b32 a229, v6""")


def mod_unit(a):
    a.wait_vm("c")
    for i in range(5):
        a(f"v_lshlrev_b32 v{8+i}, 16, v{8+i}")
    for i in range(5):
        a(f"v_mul_f32 v{40+i}, {hx(-LOG2E)}, v{8+i}")
    for i in range(5):
        a(f"v_exp_f32 v{40+i}, v{40+i}")
    for i in range(5):
        a(f"v_add_f32 v{40+i}, 1.0, v{40+i}")
    for i in range(5):
        a(f"v_rcp_f32 v{40+i}, v{40+i}")
    for i in range(5):
        a(f"v_mul_f32 v{40+i}, v{40+i}, v{8+i}")
    for i in range(5):
        a(f"v_cvt_pk_bf16_f32 v{40+i}, v{40+i}, v{40+i}")
    for i in range(5):
        a(f"v_and_b32 v{40+2*i+10}, 0xffff0000, v{40+i}")
    a("s_waitcnt lgkmcnt(0)")
    a(f"""s_add_u32 {CTR}, {CTR}, 1
s_mul_i32 {NONCE}, {CTR}, 0x9e3779b1
s_xor_b32 {NONCE}, {NONCE}, 0x5bd1e995""")
    a.wait_vm("wm")
    for i in range(5):
        s = 50 + 2 * i
        for d in range(4):
            src = 96 + 4 * i + d
            t = 60 + 2 * (d % 2)
            a(f"v_lshlrev_b32 v{t}, 16, v{src}\nv_and_b32 v{t+1}, 0xffff0000, v{src}")
            if i == 0:
                a(f"v_pk_mul_f32 {vr(64+2*d,2)}, {vr(t,2)}, {vr(s,2)} op_sel_hi:[1,0]")
            else:
                a(f"v_pk_fma_f32 {vr(64+2*d,2)}, {vr(t,2)}, {vr(s,2)}, {vr(64+2*d,2)} op_sel_hi:[1,0,1]")
    for k in range(4):
        a(f"v_permlane32_swap_b32 v{64+k}, v{68+k}")
    for k in range(4):
        a(f"v_add_f32 v{64+k}, v{64+k}, v{68+k}")
    for k in range(2):
        a(f"v_permlane16_swap_b32 v{64+k}, v{66+k}")
    for k in range(2):
        a(f"v_add_f32 v{64+k}, v{64+k}, v{66+k}")
    for k in range(2):
        a(f"v_add_f32_dpp v{64+k}, v{64+k}, v{64+k} row_ror:8 row_mask:0xf bank_mask:0xf")
    a(f"""v_and_b32 v6, 7, v0
v_lshlrev_b32 v6, 5, v6
v_lshrrev_b32 v7, 4, v0
v_lshl_add_u32 v6, v7, 3, v6
s_lshl_b32 {T6}, {W}, 8
s_add_u32 {T6}, {T6}, {MP}
v_add_u32 v6, {T6}, v6
ds_write_b64 v6, v[64:65]
v_lshlrev_b32 v7, 2, v0
v_add_u32 v7, {MP}, v7
s_mul_i32 {T4}, {P}, 1093
s_lshr_b32 {T4}, {T4}, 16
s_mul_i32 {T5}, {T4}, 60
s_sub_u32 {T5}, {P}, {T5}
s_mul_i32 {T4}, {T4}, {MODP_STRIDE}
s_lshl_b32 {T5}, {T5}, 9
s_add_u32 {T4}, {T4}, {T5}
s_cmp_eq_u32 {W}, 0
s_mov_b32 {T5}, {OOB}
s_cselect_b32 {T5}, {WS_MODP}, {T5}
s_add_u32 {T4}, {T4}, {T5}
v_lshl_add_u32 v13, v0, 3, {T4}""")
    a.wait_lg()
    a("s_barrier")
    for k in range(4):
        a(f"ds_read_b32 v{64+k}, v7 offset:{256*k}")
    a(f"v_mov_b32 v69, {NONCE}")
    a.wait_lg()
    a("v_add_f32 v64, v64, v65\nv_add_f32 v66, v66, v67\nv_add_f32 v68, v64, v66")
    a.bst("v[68:69]", "v13", SRD_WS, 0, "modst", "sc1", "dwordx2")
    a.stamp("modpub")


def mod_addresses(a):
    a(f"""s_mul_i32 {T4}, {W}, 160
s_mul_i32 {T5}, {W}, 1280
s_add_u32 {T5}, {T5}, {MP}
s_mul_i32 {T6}, {J}, 80
s_lshl_b32 {T7}, {S_KQ2}, 6""")
    a(f"""v_lshlrev_b32 v13, 1, v0
s_add_u32 {T0}, {T4}, 640
v_add_u32 v4, {T0}, v13
s_add_u32 {T1}, {T4}, 768
s_sub_u32 {T2}, {T4}, 32
v_mov_b32 v14, {T2}
v_mov_b32 v15, {T1}
v_cmp_gt_u32 vcc, 16, v0
v_cndmask_b32 v14, v14, v15, vcc
v_add_u32 v5, v14, v13
v_lshl_add_u32 v8, v0, 3, {T5}
v_add_u32 v9, 512, v8
v_add_u32 v10, 1024, v8""")
    a(f"""s_add_u32 {T0}, {T4}, 96
v_add_u32 v6, {T0}, v13
s_mul_i32 {T0}, {W}, 30
s_sub_u32 {T0}, {T0}, 32
v_add_u32 v14, {T0}, v0
v_mul_u32_u24 v15, 1639, v14
v_lshrrev_b32 v15, 16, v15
v_mul_u32_u24 v36, 40, v15
v_sub_u32 v36, v14, v36
v_lshlrev_b32 v36, 1, v36
v_cmp_eq_u32 {M0_}, 1, v15
v_mov_b32 v37, 1280
v_mov_b32 v38, 2560
v_cndmask_b32 v37, v37, v38, {M0_}
v_mov_b32 v38, 3200
v_cmp_eq_u32 vcc, 2, v15
v_cndmask_b32 v37, v37, v38, vcc
v_add3_u32 v36, v36, v37, {T6}
v_lshlrev_b32 v14, 3, v14
v_add_u32 v14, {MSH}, v14
v_cmp_le_u32 {M1_}, 32, v0
v_cndmask_b32 v6, v6, v36, {M1_}
v_cndmask_b32 v10, v10, v14, {M1_}
s_and_b64 {M0_}, {M0_}, {M1_}""")
    for grp in (2, 3):
        a(f"s_lshl_b32 {T0}, {W}, 4")
        if grp == 2:
            a(f"s_sub_u32 {T0}, {T0}, 62\nv_add_u32 v14, {T0}, v0")
        else:
            a(f"v_add_u32 v14, 2, v0\nv_min_u32 v14, 15, v14\nv_add_u32 v14, {T0}, v14")
        a(f"""v_and_b32 v15, 31, v14
v_lshlrev_b32 v15, 1, v15
v_mov_b32 v37, 2560
v_mov_b32 v38, 1920
v_cmp_le_u32 {M2_}, 32, v14
v_cndmask_b32 v37, v37, v38, {M2_}
v_add3_u32 v15, v15, v37, {T7}
v_lshlrev_b32 v14, 3, v14
v_add_u32 v14, {MSH+960}, v14""")
        if grp == 2:
            a(f"""v_cmp_le_u32 vcc, 62, v0
v_cndmask_b32 v6, v6, v15, vcc
v_cndmask_b32 v10, v10, v14, vcc
s_andn2_b64 {M0_}, {M0_}, vcc
s_andn2_b64 {M2_}, vcc, {M2_}
s_or_b64 {M0_}, {M0_}, {M2_}""")
        else:
            a(f"""v_mov_b32 v7, v15
v_mov_b32 v11, v14
s_not_b64 {M2_}, {M2_}""")
    for k in range(4):
        a(f"v_lshlrev_b32 v{4+k}, 3, v{4+k}\nv_add_u32 v{4+k}, {WS_MODP}, v{4+k}")


def mod_loads(a):
    for grp in range(4):
        for kq in range(4):
            a.bld(vr(128 + 16 * grp + 4 * kq), f"v{4+grp}", SRD_WS, MODP_STRIDE * kq, "modp", "sc1")


def mod_finish(a):
    chk, ok = a.label("modchk"), a.label("modok")
    a.wait_vm("modp")
    saved = list(a.vm)
    a(f"s_mov_b32 {S_SPIN}, {SPIN_LIMIT}\ns_mov_b64 s[98:99], 0xffff")
    a(f"{chk}:")
    a("v_min_u32 v14, v129, v131\nv_max_u32 v15, v129, v131")
    for q in range(1, 16):
        b = 128 + 4 * q
        a(f"v_min3_u32 v14, v14, v{b+1}, v{b+3}\nv_max3_u32 v15, v15, v{b+1}, v{b+3}")
    a(f"""v_cmp_ne_u32 vcc, {NONCE}, v14
v_cmp_ne_u32 {M3_}, {NONCE}, v15
s_or_b64 vcc, vcc, {M3_}
s_cbranch_vccz {ok}
s_sub_u32 {S_SPIN}, {S_SPIN}, 1
s_cbranch_scc1 L_end""")
    a.forget()
    mod_loads(a)
    a("s_waitcnt vmcnt(0)")
    a(f"s_branch {chk}")
    a(f"{ok}:")
    a.vm = saved
    a.forget()
    a.stamp("modseen")
    for grp in range(4):
        b = 128 + 16 * grp
        a(f"""v_add_f32 v{b}, v{b}, v{b+4}
v_add_f32 v{b+2}, v{b+2}, v{b+6}
v_add_f32 v{b+8}, v{b+8}, v{b+12}
v_add_f32 v{b+10}, v{b+10}, v{b+14}
v_add_f32 v{b}, v{b}, v{b+8}
v_add_f32 v{b+2}, v{b+2}, v{b+10}
v_cvt_pk_bf16_f32 v{b+4}, v{b}, v{b+2}
v_lshlrev_b32 v{b}, 16, v{b+4}
v_and_b32 v{b+1}, 0xffff0000, v{b+4}""")
        if grp == 0:
            a(f"v_pk_add_f32 {vr(b,2)}, {vr(b,2)}, 1.0 op_sel_hi:[1,0]")
        else:
            if grp == 1:
                a(f"v_cndmask_b32 v{b+4}, 0, 1.0, s[98:99]")
            else:
                a(f"v_cndmask_b32 v{b+4}, 0, 1.0, {M0_ if grp == 2 else M2_}")
            a(f"v_pk_add_f32 {vr(b,2)}, {vr(b,2)}, {vr(b+4,2)} op_sel_hi:[1,0]")
        a(f"""v_cvt_pk_bf16_f32 v{b+4}, v{b}, v{b+1}
v_lshlrev_b32 v{b}, 16, v{b+4}
v_and_b32 v{b+1}, 0xffff0000, v{b+4}""")
        a(f"ds_write_b64 v{8+grp}, {vr(b,2)}", "modw")


def weight_frags(a):
    a(f"""v_lshrrev_b32 v13, 4, v0
v_bfe_u32 v14, v0, 2, 2
v_and_b32 v15, 3, v0
v_lshl_add_u32 v36, v13, 3, v14
v_mul_u32_u24 v36, 40, v36
v_lshl_add_u32 v36, v15, 3, v36
s_mul_i32 {T6}, {W}, {B_SZ}
s_add_u32 {T6}, {T6}, {B_BASE}
v_add_u32 v36, {T6}, v36""")
    a.wait_vm("wkv")
    for t in range(4):
        for ks in range(5):
            for r in range(2):
                off = 6400 * (t >> 1) + 32 * (t & 1) + 40 * (32 * ks + 4 * r)
                a(f"ds_read_b64_tr_b16 {ar(100 + 20*t + 4*ks + 2*r, 2)}, v36 offset:{off}", "wkvf")


def wq_frags(a, lo, hi):
    if lo >= hi:
        return
    a(f"""v_lshrrev_b32 v13, 4, v0
v_bfe_u32 v14, v0, 2, 2
v_and_b32 v15, 3, v0
v_lshl_add_u32 v37, v13, 2, v14
v_mul_u32_u24 v37, 160, v37
v_lshl_add_u32 v37, v15, 3, v37
s_mul_i32 {T6}, {W}, {A_SZ}
v_add_u32 v37, {T6}, v37""")
    for ks in range(lo, hi):
        for nt in range(5):
            for r in range(2):
                a(f"ds_read_b64_tr_b16 {ar(20*ks + 4*nt + 2*r, 2)}, v37 offset:{5120*ks + 2560*r + 32*nt}", "wqf")


def ln1(a):
    a.wait_vm("x")
    for k in range(20):
        a(f"v_lshlrev_b32 v{40+2*k}, 16, v{16+k}\nv_and_b32 v{41+2*k}, 0xffff0000, v{16+k}")
    a("v_pk_add_f32 v[80:81], v[40:41], v[42:43]\nv_pk_mul_f32 v[82:83], v[40:41], v[40:41]")
    a("v_pk_fma_f32 v[82:83], v[42:43], v[42:43], v[82:83]")
    for k in range(2, 20):
        a(f"v_pk_add_f32 v[80:81], v[80:81], {vr(40+2*k,2)}\nv_pk_fma_f32 v[82:83], {vr(40+2*k,2)}, {vr(40+2*k,2)}, v[82:83]")
    a(f"""v_add_f32 v80, v80, v81
v_add_f32 v81, v82, v83
v_and_b32 v13, 15, v0
v_lshlrev_b32 v13, 5, v13
v_add_u32 v14, {STX}, v13
s_lshl_b32 {T6}, {W}, 3
v_add_u32 v13, {T6}, v14
v_permlane32_swap_b32 v80, v81
v_add_f32 v80, v80, v81
v_mov_b32 v81, v80
v_lshrrev_b32 v15, 5, v0
v_lshl_add_u32 v13, v15, 2, v13
v_permlane16_swap_b32 v80, v81
v_add_f32 v80, v80, v81
ds_write_b32 v13, v80""")
    a.wait_lg()
    a("s_barrier")
    a("ds_read_b128 v[80:83], v14\nds_read_b128 v[84:87], v14 offset:16")
    a.wait_lg()
    a(f"""v_pk_add_f32 v[80:81], v[80:81], v[82:83]
v_pk_add_f32 v[84:85], v[84:85], v[86:87]
v_pk_add_f32 v[80:81], v[80:81], v[84:85]
v_mul_f32 v80, {hx(1/640)}, v80
v_mul_f32 v81, {hx(1/640)}, v81
v_fma_f32 v81, -v80, v80, v81
v_max_f32 v81, 0, v81
v_add_f32 v81, {hx(1e-5)}, v81
v_rsq_f32 v82, v81
s_nop 0
v_mul_f32 v84, v80, v82
v_sub_f32 v84, 0, v84""")
    for k in range(20):
        a(f"v_pk_fma_f32 {vr(40+2*k,2)}, {vr(40+2*k,2)}, v[82:83], v[84:85] op_sel_hi:[1,0,0]")
    a.stamp("ln1")


def h_and_kv(a):
    a(f"""v_lshrrev_b32 v13, 4, v0
s_mul_i32 {T6}, {W}, 1280
s_add_u32 {T6}, {T6}, {MP}
v_lshl_add_u32 v2, v13, 5, {T6}""")
    for ks in range(5):
        for m in range(2):
            for q in range(2):
                a(f"ds_read_b128 {vr(128 + 40*m + 8*ks + 4*q)}, v2 offset:{640*m + 128*ks + 16*q}", f"mf{ks}")
    a(f"""s_mul_i32 {T4}, {G}, 81920
s_lshr_b32 {T5}, {J}, 1
s_mul_i32 {T5}, {T5}, 20480
s_add_u32 {T4}, {T4}, {T5}
s_mul_i32 {T5}, {W}, 5120
s_add_u32 {T4}, {T4}, {T5}
s_and_b32 {T5}, {J}, 1
s_lshl_b32 {T5}, {T5}, 7
s_add_u32 {T4}, {T4}, {T5}
s_add_u32 {T4}, {T4}, {WS_HX}
v_add_u32 v3, {T4}, v1
v_and_b32 v13, 8, v0
v_lshlrev_b32 v13, 27, v13
v_add_u32 v3, v13, v3""")
    for ks in range(5):
        a.wait_lg(f"mf{ks}")
        for q in range(4):
            b = 8 * ks + 2 * q
            a(f"v_pk_fma_f32 {vr(40+b,2)}, {vr(40+b,2)}, {vr(128+b,2)}, {vr(168+b,2)}")
        for q in range(4):
            b = 8 * ks + 2 * q
            a(f"v_cvt_pk_bf16_f32 v{16+4*ks+q}, v{40+b}, v{41+b}")
        a.bst(vr(16 + 4 * ks), "v3", SRD_WS, 1024 * ks, "hst", "sc1")
        for t in range(4):
            wf, hf, acc = ar(100 + 20 * t + 4 * ks), vr(16 + 4 * ks), vr(80 + 4 * t)
            x, y = (wf, hf) if t < 2 else (hf, wf)
            a(f"v_mfma_f32_16x16x32_bf16 {acc}, {x}, {y}, {acc if ks else 0}")
    a(f"""s_mul_i32 {T6}, {W}, {B_SZ}
s_add_u32 {T6}, {T6}, {B_BASE}
v_add_u32 v13, {T6}, v1
s_lshl_b32 {T6}, {W}, 10
s_add_u32 {T6}, {T6}, {B_BASE}
v_add_u32 v14, {T6}, v1""")
    lw = [a.label(f"kvw{k}") for k in range(4)]
    ld = a.label("kvd")
    a(f"""s_mul_i32 {T4}, {P}, 768
s_add_u32 {T4}, {T4}, {WS_KV}
v_and_b32 v36, 15, v0
v_lshrrev_b32 v37, 4, v0
s_mov_b64 {M0_}, 0
s_cmp_eq_u32 {W}, 1
s_cbranch_scc1 {lw[1]}
s_cmp_eq_u32 {W}, 2
s_cbranch_scc1 {lw[2]}
s_cmp_eq_u32 {W}, 3
s_cbranch_scc1 {lw[3]}""")
    a(f"""v_lshrrev_b32 v38, 1, v37
v_lshlrev_b32 v38, 7, v38
v_lshl_add_u32 v38, v36, 4, v38
v_and_b32 v37, 1, v37
v_lshl_add_u32 v38, v37, 3, v38
v_cmp_gt_u32 vcc, 8, v36
s_branch {ld}
{lw[1]}:
v_lshlrev_b32 v38, 3, v0
v_add_u32 v38, 256, v38
v_add_u32 v39, 256, v38
v_cmp_gt_u32 vcc, 8, v0
v_cndmask_b32 v38, v39, v38, vcc
s_mov_b64 vcc, 0xf00ff
s_mov_b64 {M0_}, 0xf0000
s_branch {ld}
{lw[2]}:
v_lshlrev_b32 v38, 4, v36
v_lshl_add_u32 v38, v37, 3, v38
v_add_u32 v38, 320, v38
s_mov_b32 vcc_lo, -1
s_mov_b32 vcc_hi, 0
s_branch {ld}
{lw[3]}:
v_lshlrev_b32 v38, 4, v36
v_lshl_add_u32 v38, v37, 3, v38
v_add_u32 v38, 576, v38
s_mov_b64 vcc, 0xf000f
{ld}:
v_mov_b32 v39, {OOB}
v_cndmask_b32 v38, v39, v38, vcc
v_add_u32 v38, {T4}, v38
v_mov_b32 v39, 0x3f803f80
v_cmp_gt_u32 vcc, 18, v0
v_cndmask_b32 v39, 0, v39, vcc""")
    for t in range(4):
        a(f"ds_write_b128 v13, {vr(80+4*t)} offset:{1024*t}")
    a.wait_lg()
    a("s_barrier")
    for k in range(4):
        a(f"ds_read_b128 {vr(80+4*k)}, v14 offset:{B_SZ*k}")
    a.wait_lg()
    a(f"""v_pk_add_f32 v[80:81], v[80:81], v[84:85]
v_pk_add_f32 v[82:83], v[82:83], v[86:87]
v_pk_add_f32 v[88:89], v[88:89], v[92:93]
v_pk_add_f32 v[90:91], v[90:91], v[94:95]
v_pk_add_f32 v[80:81], v[80:81], v[88:89]
v_pk_add_f32 v[82:83], v[82:83], v[90:91]
v_cvt_pk_bf16_f32 v80, v80, v81
v_cvt_pk_bf16_f32 v81, v82, v83
v_cndmask_b32 v80, v80, v39, {M0_}
v_cndmask_b32 v81, v81, v39, {M0_}""")
    a.bst("v[80:81]", "v38", SRD_WS, 0, "kvst", "sc1", "dwordx2")
    a.stamp("kvst")


def tile_loads(a, n_per, first, count, dst, vaddr, ttstride, tag, start=0):
    for f in range(first, first + count):
        sg, s = divmod(f, n_per)
        if f == first or s % 4 == 0:
            a(f"""s_add_u32 {T4}, {W}, {1+sg}
s_and_b32 {T4}, {T4}, 3
s_mul_i32 {T4}, {T4}, {ttstride}
s_add_u32 {T4}, {T4}, {4096*(s//4)}""")
        a(f"buffer_load_dwordx4 {vr(dst(f))}, {vaddr}, {SRD_WS}, {T4} offen offset:{1024*(s%4)} sc1", f"{tag}{f}")


def ksplit_addresses(a, stride, vw, vrd):
    a(f"s_mul_i32 {T4}, {W}, {stride}\nv_add_u32 v{vw}, {T4}, v1")
    for sg in range(3):
        a(f"""s_add_u32 {T4}, {W}, {3-sg}
s_and_b32 {T4}, {T4}, 3
s_mul_i32 {T4}, {T4}, {stride}
s_add_u32 {T4}, {T4}, {5120*sg}
v_add_u32 v{vrd+sg}, {T4}, v1""")


def ksplit(a, nks, wreg, breg, tag, accs, vw, after=None):
    for sg in range(4):
        acc = accs[sg % 2]
        pend = list(range(5)) if sg else []
        for s in range(nks):
            f = sg * nks + s
            a.wait_vm(f"{tag}{f}")
            for nt in range(5):
                c = vr(acc + 4 * nt)
                a(f"v_mfma_f32_16x16x32_bf16 {c}, {wreg(s, nt)}, {vr(breg(f))}, {c if s else 0}")
                if pend and (s, nt) >= (1, 0):
                    k = pend.pop(0)
                    a(f"ds_write_b128 v{vw}, {vr(accs[(sg-1) % 2] + 4*k)} offset:{5120*(sg-1) + 1024*k}", "rpw")
            if after:
                after(sg, s)


def ksplit_reduce(a, acc, vrd, tmp):
    a.wait_lg()
    a("s_barrier")
    for sg in range(3):
        for nt in range(5):
            a(f"ds_read_b128 {vr(tmp + 20*sg + 4*nt)}, v{vrd+sg} offset:{1024*nt}", f"rp{sg}")
    for sg in range(3):
        a.wait_lg(f"rp{sg}")
        for k in range(10):
            a(f"v_pk_add_f32 {vr(acc+2*k,2)}, {vr(acc+2*k,2)}, {vr(tmp+20*sg+2*k,2)}")


def group_flag_addr(a, base, v, mode):
    a(f"s_lshl_b32 {T4}, {G}, 7\ns_add_u32 {T4}, {T4}, {base}")
    if mode == "pub":
        a(f"s_lshl_b32 {T5}, {J}, 4\ns_lshl_b32 {T6}, {W}, 2\ns_add_u32 {T4}, {T4}, {T5}\ns_add_u32 {T4}, {T4}, {T6}\nv_mov_b32 v{v}, {T4}")
    elif mode == "pubT":
        a(f"s_lshl_b32 {T5}, {W}, 5\ns_lshl_b32 {T6}, {J}, 2\ns_add_u32 {T4}, {T4}, {T5}\ns_add_u32 {T4}, {T4}, {T6}\nv_mov_b32 v{v}, {T4}")
    else:
        a(f"s_lshl_b32 {T5}, {W}, 5\ns_add_u32 {T4}, {T4}, {T5}\nv_and_b32 v{v}, 7, v0\nv_lshl_add_u32 v{v}, v{v}, 2, {T4}")


def one_lane(a, on):
    a("s_mov_b64 exec, 1" if on else "s_mov_b64 exec, -1")


def kv_flag_and_q(a):
    cfg = a.cfg
    group_flag_addr(a, WS_FHX, 4, "pubT")
    a(f"""s_lshl_b32 {T4}, {P}, 4
s_lshl_b32 {T5}, {W}, 2
s_add_u32 {T4}, {T4}, {T5}
s_add_u32 {T4}, {T4}, {WS_FKV}
v_lshl_add_u32 v5, v0, 12, {T4}
v_mov_b32 v6, {NONCE}""")
    a.wait_vm("hst")
    one_lane(a, True)
    a(f"buffer_store_dword v6, v4, {SRD_WS}, 0 offen sc1", "flag")
    a("s_mov_b64 exec, 0xff")
    a.wait_vm("kvst")
    a(f"buffer_store_dword v6, v5, {SRD_WS}, 0 offen sc1", "flag")
    one_lane(a, False)
    wq_dma(a, cfg["wq2"], 25)
    a.stamp("kvflag")
    a(f"""v_and_b32 v13, 15, v0
s_and_b32 {T4}, {W}, 1
s_lshl_b32 {T4}, {T4}, 4
v_add_u32 v13, {T4}, v13
s_lshr_b32 {T4}, {W}, 1
s_mul_i32 {T4}, {T4}, 1280
s_add_u32 {T4}, {T4}, {QI}
v_lshrrev_b32 v14, 4, v0""")
    for nt in range(5):
        a(f"""v_add_u32 v15, {4*nt}, v14
v_mul_u32_u24 v36, 205, v15
v_lshrrev_b32 v36, 10, v36
v_mul_u32_u24 v38, 5, v36
v_sub_u32 v15, v15, v38
v_mul_u32_u24 v36, 2560, v36
v_lshrrev_b32 v38, 1, v15
v_lshlrev_b32 v38, 9, v38
v_and_b32 v39, 1, v15
v_lshl_add_u32 v38, v39, 3, v38
v_lshl_add_u32 v38, v13, 4, v38
v_lshlrev_b32 v39, 3, v13
v_add_u32 v39, 1024, v39
v_cmp_eq_u32 vcc, 4, v15
v_cndmask_b32 v38, v38, v39, vcc
v_add3_u32 v{8+nt}, v36, v38, {T4}""")
    ksplit_addresses(a, A_SZ, 2, 4)
    a.wait_vm("wq")
    wq_frags(a, cfg["wqf1"], 5)
    group_flag_addr(a, WS_FHX, 7, "sub")
    a.poll("v7", 14)
    a.stamp("hseen")
    a(f"""s_mul_i32 {T4}, {G}, 81920
s_mul_i32 {T5}, {W}, 5120
s_add_u32 {T4}, {T4}, {T5}
s_add_u32 {T4}, {T4}, {WS_HX}
v_add_u32 v7, {T4}, v1""")
    tile_loads(a, 5, 0, 20, lambda f: 128 + 4 * f, "v7", 20480, "hx")
    a.wait_lg()
    ksplit(a, 5, lambda s, nt: ar(20 * s + 4 * nt), lambda f: 128 + 4 * f, "hx", (40, 60), 2)
    a.stamp("qmm")


def kv_loads(a):
    a(f"""s_lshr_b32 {T4}, {G}, 2
s_lshl_b32 {T4}, {T4}, 12
s_lshl_b32 {T5}, {W}, 10
s_add_u32 {T4}, {T4}, {T5}
s_add_u32 {T4}, {T4}, {WS_FKV}
v_add_u32 v7, {T4}, v1""")
    a(f"""s_mul_i32 {T4}, {W}, {64*768}
s_add_u32 {T4}, {T4}, {WS_KV}
v_bfe_u32 v13, v0, 2, 1
v_mul_u32_u24 v13, 768, v13
v_bfe_u32 v14, v0, 4, 1
v_mul_u32_u24 v14, 1536, v14
v_add3_u32 v13, v13, v14, {T4}
v_and_b32 v14, 3, v0
v_bfe_u32 v15, v0, 3, 1
v_lshl_add_u32 v14, v15, 2, v14
v_lshrrev_b32 v15, 5, v0
v_lshlrev_b32 v36, 7, v15
v_lshl_add_u32 v36, v14, 4, v36
v_add_u32 v36, v36, v13
v_lshl_add_u32 v37, v14, 3, v13
v_add_u32 v37, 256, v37
s_add_u32 {T5}, {T4}, 656
v_mov_b32 v38, {T5}
v_cmp_gt_u32 vcc, 32, v0
v_cndmask_b32 v37, v38, v37, vcc
v_and_b32 v14, 31, v0
v_lshlrev_b32 v38, 4, v14
v_add_u32 v38, 320, v38
v_min_u32 v38, 656, v38
v_mul_u32_u24 v15, 768, v15
v_add3_u32 v38, v38, v15, {T4}""")
    a.poll("v7", 80, 4)
    a.stamp("kvseen")
    def kl(kt):
        a.bld(ar(14 * kt), "v36", SRD_WS, 3072 * kt, f"k{kt}", "sc1")
        a.bld(ar(14 * kt + 4, 2), "v37", SRD_WS, 3072 * kt, f"k{kt}", "sc1", "dwordx2")
    def vl(kt):
        for m in range(2):
            if m == 0:
                a.bld(ar(14 * kt + 6), "v38", SRD_WS, 3072 * kt, f"v{kt}", "sc1")
            else:
                a.bld(ar(14 * kt + 10), "v39", SRD_WS, 3072 * kt, f"v{kt}", "sc1")
    a("v_add_u32 v39, 1536, v38")
    kl(0)
    for kt in range(15):
        kl(kt + 1)
        vl(kt)
    return lambda: vl(15)


def q_finish(a):
    ksplit_reduce(a, 60, 4, 128)
    sc = hx(20 ** -0.5 * LOG2E)
    a(f"s_mov_b32 {T4}, {sc}")
    for k in range(20):
        a(f"v_mul_f32 v{60+k}, {T4}, v{60+k}")
    for nt in range(5):
        a(f"v_cvt_pk_bf16_f32 v{60+4*nt}, v{60+4*nt}, v{61+4*nt}\nv_cvt_pk_bf16_f32 v{61+4*nt}, v{62+4*nt}, v{63+4*nt}")
    for nt in range(5):
        a(f"ds_write_b64 v{8+nt}, {vr(60+4*nt,2)}")
    a(f"v_mov_b32 v13, {VOTE}\nv_mov_b32 v14, 0\nds_write_b32 v13, v14")
    a.wait_lg()
    a("s_barrier")


S_ = (16, 32)
P_ = 48
O_ = (56, 72)
Q1_ = (88, 96)
Q2_ = (92, 100)
V_QA, V_QB, V_OPW = 2, 3, 4
XR = 246
WO_ = 104


def q_read(a, buf, off):
    a(f"ds_read_b128 {vr(Q1_[buf])}, v{V_QA} offset:{off}", "q")
    a(f"ds_read_b64 {vr(Q2_[buf],2)}, v{V_QB} offset:{off}", "q")


def qk(buf, kt, qb):
    s = vr(S_[buf], 16)
    return (f"v_mfma_f32_32x32x16_bf16 {s}, {ar(14*kt)}, {vr(Q1_[qb])}, 0",
            f"v_mfma_f32_32x32x8_bf16 {s}, {ar(14*kt+4,2)}, {vr(Q2_[qb],2)}, {s}")


def attn_pass(a, par, first, waits, hooks):
    o, op = vr(O_[par], 16), vr(O_[1 - par], 16)
    for kt in range(16):
        sc = S_[kt % 2]
        e = lambda i: f"v_exp_f32 v{sc+i}, v{sc+i}"
        c = lambda i: f"v_cvt_pk_bf16_f32 v{P_+i}, v{sc+2*i}, v{sc+2*i+1}"
        nk, nq = (kt + 1) % 16, par if kt < 15 else 1 - par
        qk1, qk2 = qk((kt + 1) % 2, nk, nq)
        pv1 = f"v_mfma_f32_32x32x16_bf16 {o}, {ar(14*kt+6)}, {vr(P_)}, {o if kt else 0}"
        if kt:
            pv2 = f"v_mfma_f32_32x32x16_bf16 {o}, {ar(14*(kt-1)+10)}, {vr(P_+4)}, {o}"
        else:
            pv2 = f"v_mfma_f32_32x32x16_bf16 {op}, {ar(14*15+10)}, {vr(P_+4)}, {op}"
        h = lambda name: (lambda: hooks.get((kt, name), lambda: None)())
        a(e(0)); a(e(1))
        if not (first and kt == 0):
            a(pv2)
        h("m0")()
        a(e(2)); a(c(0)); a(e(3)); a(e(4)); a(c(1))
        if waits and kt < 15:
            a.wait_vm(f"k{nk}")
        if kt == 15:
            a.wait_lg("q")
        a(qk1)
        h("m1")()
        a(e(5)); a(e(6)); a(c(2)); a(e(7)); a(e(8)); a(c(3))
        a(qk2)
        h("m2")()
        a(e(9)); a(e(10)); a(c(4)); a(e(11)); a(e(12))
        if waits:
            a.wait_vm(f"v{kt}")
        a(pv1)
        h("m3")()
        a(e(13)); a(c(5)); a(e(14)); a(e(15)); a(c(6)); a(c(7))


def op_write_hooks(a, par_prev, off_reg_imm):
    o = O_[par_prev]
    return {(1, "m1"): lambda: a(f"ds_write_b128 v{V_OPW}, {vr(o)} offset:{off_reg_imm}"),
            (1, "m2"): lambda: a(f"ds_write_b128 v{V_OPW}, {vr(o+4)} offset:{off_reg_imm+1024}"),
            (1, "m3"): lambda: a(f"ds_write_b128 v{V_OPW}, {vr(o+8)} offset:{off_reg_imm+2048}")}


def prep_issue(a):
    a(f"""s_mul_i32 {T7}, {W}, 9216
s_add_u32 {T7}, {T7}, {PS}
v_accvgpr_read_b32 v13, a229""")
    for m, srd in enumerate((SRD_WG, SRD_WU)):
        for i in range(2):
            a.dma("v13", srd, 24576 * i, T7, 2048 * m + 1024 * i, "prep")
    for i in range(5):
        a(f"v_accvgpr_read_b32 v13, a{224+i}")
        a.dma("v13", SRD_PD, 0, T7, 4096 + 1024 * i, "prep")
    a(f"""s_lshl_b32 {T4}, {G}, 2
s_add_u32 {T4}, {T4}, {W}
s_mul_i32 {T4}, {T4}, {16*1280}
s_mul_i32 {T5}, {J}, 160
s_add_u32 {T4}, {T4}, {T5}
v_and_b32 v13, 15, v0
v_mul_u32_u24 v13, 1280, v13
v_lshrrev_b32 v14, 4, v0
v_lshlrev_b32 v14, 3, v14
v_add3_u32 v5, v13, v14, {T4}""")
    for nt in range(5):
        a.bld(vr(XR + 2 * nt, 2), "v5", SRD_X, 32 * nt, "xr", w="dwordx2")


def prep_work(a):
    t = 104
    a(f"""s_mul_i32 {T7}, {W}, 9216
s_add_u32 {T7}, {T7}, {PS}
v_bfe_u32 v13, v0, 4, 1
v_lshlrev_b32 v13, 11, v13
v_lshrrev_b32 v14, 5, v0
v_lshlrev_b32 v14, 3, v14
v_bfe_u32 v15, v0, 2, 2
v_add_u32 v14, v14, v15
v_lshl_add_u32 v13, v14, 7, v13
v_and_b32 v14, 3, v0
v_lshl_add_u32 v13, v14, 3, v13
v_add_u32 v13, {T7}, v13
v_lshrrev_b32 v6, 4, v0
v_lshl_add_u32 v6, v6, 2, v15
v_mul_u32_u24 v6, 160, v6
v_lshl_add_u32 v6, v14, 3, v6
v_add_u32 v6, {T7}, v6
v_bfe_u32 v14, v0, 2, 1
v_lshlrev_b32 v14, 8, v14
v_lshrrev_b32 v15, 5, v0
v_lshl_add_u32 v14, v15, 5, v14
s_lshl_b32 {T4}, {W}, 6
s_add_u32 {T4}, {T4}, {MSH+960}
v_add_u32 v14, {T4}, v14""")
    a(f"ds_read_b128 {vr(t+40)}, v14\nds_read_b128 {vr(t+44)}, v14 offset:16", "pm")
    a.wait_vm("prep")
    for i in range(4):
        for r in range(2):
            a(f"ds_read_b64_tr_b16 {vr(t+4*i+2*r,2)}, v13 offset:{512*r + 32*i}", f"pg{i}")
    for nt in range(5):
        for r in range(2):
            a(f"ds_read_b64_tr_b16 {vr(t+16+4*nt+2*r,2)}, v6 offset:{4096 + 2560*r + 32*nt}", f"pd{nt}")
    a("v_and_b32 v14, 27, v0\nv_cmp_eq_u32 vcc, 0, v14")
    a.wait_lg("pm")
    for q in range(4):
        a(f"v_cvt_pk_bf16_f32 v{t+40+q}, v{t+40+2*q}, v{t+41+2*q}")
    for q in range(4):
        a(f"v_cndmask_b32 v{t+40+q}, 0, v{t+40+q}, vcc")
    a(f"""s_mul_i32 {T5}, {S_KQ2}, 24
s_sub_u32 {T5}, {P}, {T5}
s_lshl_b32 {T5}, {T5}, 2
s_lshl_b32 {T6}, {S_KQ2}, 2
s_add_u32 {T6}, {T6}, {W}
s_mul_i32 {T6}, {T6}, 3072
s_cmp_ge_u32 {P}, 240
s_mov_b32 {T7}, {WS_WGU}
s_cselect_b32 {T7}, {OOB}, {T7}
v_add_u32 v15, {T7}, v1
s_lshl_b32 {T7}, {W}, 10
s_add_u32 {T7}, {T7}, {UBX}
v_lshl_add_u32 v14, v0, 2, {T7}""")
    for i in range(4):
        a(f"""s_add_u32 {T0}, {T5}, {i}
s_mul_i32 {T1}, {T0}, 21846
s_lshr_b32 {T1}, {T1}, 16
s_mul_i32 {T2}, {T1}, 3
s_sub_u32 {T2}, {T0}, {T2}
s_mul_i32 {T1}, {T1}, {40*3072}
s_lshl_b32 {T2}, {T2}, 10
s_add_u32 {T1}, {T1}, {T2}
s_add_u32 {T1}, {T1}, {T6}""")
        a.wait_lg(f"pg{i}")
        a(f"buffer_store_dwordx4 {vr(t+4*i)}, v15, {SRD_WS}, {T1} offen sc1", "prepst")
        a(f"v_mfma_f32_32x32x16_bf16 {vr(t+48+16*(i%2),16)}, {vr(t+40)}, {vr(t+4*i)}, 0")
        if i:
            a(f"ds_write_b32 v14, v{t+48+16*((i-1)%2)} offset:{256*(i-1)}")
    a(f"ds_write_b32 v14, v{t+64} offset:768")
    a(f"v_add_u32 v15, {S_PDDST}, v1")
    for nt in range(5):
        a.wait_lg(f"pd{nt}")
        a.bst(vr(t + 16 + 4 * nt), "v15", SRD_WS, 1024 * nt, "prepst", "sc1")
    a(f"""s_lshl_b32 {T7}, {W}, 8
s_add_u32 {T7}, {T7}, {UBX}
v_lshl_add_u32 v14, v0, 2, {T7}
s_mul_i32 {T6}, {S_KQ2}, {UB_STRIDE}
s_add_u32 {T5}, {T5}, {W}
s_lshl_b32 {T5}, {T5}, 8
s_add_u32 {T6}, {T6}, {T5}
s_add_u32 {T6}, {T6}, {WS_UB}
v_lshl_add_u32 v15, v0, 2, {T6}""")
    a.wait_lg()
    a("s_barrier")
    for k in range(4):
        a(f"ds_read_b32 v{t+k}, v14 offset:{1024*k}")
    a.wait_lg()
    a(f"v_add_f32 v{t}, v{t}, v{t+1}\nv_add_f32 v{t+2}, v{t+2}, v{t+3}\nv_add_f32 v{t}, v{t}, v{t+2}")
    a.bst(f"v{t}", "v15", SRD_WS, 0, "prepst", "sc1", "dword")


def prep_flag(a):
    a(f"""s_lshl_b32 {T4}, {P}, 4
s_lshl_b32 {T5}, {W}, 2
s_add_u32 {T4}, {T4}, {T5}
s_add_u32 {T4}, {T4}, {WS_FPREP}
v_mov_b32 v13, {T4}""")
    one_lane(a, True)
    a.flag("v13", 14)
    one_lane(a, False)


def prep_check_and_wo(a):
    lp = a.label("preppoll")
    a(f"v_add_u32 v13, {WS_FPREP}, v1\ns_mov_b32 {S_SPIN}, {SPIN_LIMIT}")
    a(f"{lp}:")
    for q in range(4):
        a(f"buffer_load_dwordx4 {vr(WO_+4*q)}, v13, {SRD_WS}, 0 offen offset:{1024*q} sc1")
    a(f"s_sub_u32 {S_SPIN}, {S_SPIN}, 1\ns_cbranch_scc1 L_end\ns_waitcnt vmcnt(0)")
    a.vm = []
    a(f"v_min_u32 v14, v{WO_}, v{WO_+1}\nv_max_u32 v15, v{WO_}, v{WO_+1}")
    for q in range(1, 8):
        a(f"v_min3_u32 v14, v14, v{WO_+2*q}, v{WO_+2*q+1}\nv_max3_u32 v15, v15, v{WO_+2*q}, v{WO_+2*q+1}")
    a(f"""v_cmp_ne_u32 vcc, {NONCE}, v14
v_cmp_ne_u32 {M3_}, {NONCE}, v15
s_or_b64 vcc, vcc, {M3_}
s_cbranch_vccnz {lp}""")
    a.forget()
    a(f"""s_lshl_b32 {T4}, {J}, 2
s_add_u32 {T4}, {T4}, {W}
s_mul_i32 {T4}, {T4}, 25600
s_add_u32 {T4}, {T4}, {WS_WO}
v_add_u32 v13, {T4}, v1""")
    for f in range(25):
        a.bld(vr(WO_ + 4 * f), "v13", SRD_WS, 1024 * f, "wo", "sc1")


def attention(a, last_v):
    a(f"""v_and_b32 v13, 31, v0
v_lshrrev_b32 v14, 5, v0
v_lshlrev_b32 v14, 9, v14
v_lshl_add_u32 v14, v13, 4, v14
v_add_u32 v{V_QA}, {QI}, v14
v_lshlrev_b32 v13, 3, v13
v_add_u32 v{V_QB}, {QI+1024}, v13
s_mul_i32 {T4}, {W}, 3072
v_add_u32 v{V_OPW}, {T4}, v1""")
    q_read(a, 0, 0)
    a.wait_lg("q")
    a.wait_vm("k0")
    for x in qk(0, 0, 0):
        a(x)
    last_v()
    a.stamp("att0")
    attn_pass(a, 0, True, True, {(2, "m0"): lambda: q_read(a, 1, 1280), (6, "m0"): lambda: prep_issue(a)})
    prep_work(a)
    hk = op_write_hooks(a, 0, 0)
    hk[(2, "m0")] = lambda: q_read(a, 0, 2560)
    attn_pass(a, 1, False, False, hk)
    prep_flag(a)
    a(f"""v_add_u32 v{V_QA}, 2560, v{V_QA}
v_add_u32 v{V_QB}, 2560, v{V_QB}
v_add_u32 v{V_OPW}, 12288, v{V_OPW}
s_mov_b32 {T0}, 0""")
    lp, skip = a.label("att"), a.label("attskip")
    a(".p2align 6")
    a(f"{lp}:")
    a.lg = []
    hk = op_write_hooks(a, 1, 0)
    hk[(2, "m0")] = lambda: q_read(a, 1, 1280)
    attn_pass(a, 0, False, False, hk)
    a(f"s_cmp_lg_u32 {T0}, 2\ns_cbranch_scc1 {skip}")
    prep_check_and_wo(a)
    a(f"{skip}:")
    hk = op_write_hooks(a, 0, 12288)
    hk[(2, "m0")] = lambda: q_read(a, 0, 2560)
    attn_pass(a, 1, False, False, hk)
    a(f"""v_add_u32 v{V_QA}, 2560, v{V_QA}
v_add_u32 v{V_QB}, 2560, v{V_QB}
v_add_u32 v{V_OPW}, 24576, v{V_OPW}
s_add_u32 {T0}, {T0}, 1
s_cmp_lt_u32 {T0}, 3
s_cbranch_scc1 {lp}""")
    o = vr(O_[1], 16)
    a(f"v_mfma_f32_32x32x16_bf16 {o}, {ar(14*15+10)}, {vr(P_+4)}, {o}")
    for k in range(3):
        a(f"ds_write_b128 v{V_OPW}, {vr(O_[1]+4*k)} offset:{1024*k}")
    a.stamp("att1")


def merge_addresses(a):
    a(f"""s_and_b32 {T4}, {W}, 1
s_lshr_b32 {T5}, {W}, 1
s_lshl_b32 {T6}, {T4}, 2
s_add_u32 {T6}, {T6}, {T5}
s_mul_i32 {T6}, {T6}, 12288
v_add_u32 v2, {T6}, v1
s_mul_i32 {T6}, {G}, 81920
s_mul_i32 {T5}, {T5}, 40960
s_add_u32 {T6}, {T6}, {T5}
s_mul_i32 {T5}, {J}, 2560
s_add_u32 {T6}, {T6}, {T5}
s_add_u32 {T6}, {T6}, {WS_O}
v_and_b32 v13, 15, v0
v_lshlrev_b32 v13, 4, v13
v_bfe_u32 v14, v0, 4, 1
v_mul_u32_u24 v14, 20480, v14
v_add3_u32 v13, v13, v14, {T6}
v_lshrrev_b32 v14, 5, v0
s_lshl_b32 {T5}, {T4}, 10
v_lshl_add_u32 v3, v14, 8, v13
v_add_u32 v3, {T5}, v3
s_lshl_b32 {T5}, {T4}, 8
s_add_u32 {T5}, {T5}, 2048
v_lshl_add_u32 v4, v14, 30, v13
v_add_u32 v4, {T5}, v4""")


QA = [16 + 4 * k for k in range(12)]
QB = [64 + 4 * k for k in range(10)] + [204, 208]


def merge(a, slow):
    for t, Q in enumerate((QA, QB)):
        for k in range(4):
            for c in range(3):
                a(f"ds_read_b128 {vr(Q[3*k+c])}, v2 offset:{24576*t + 3072*k + 1024*c}", f"m{t}{k}")
    if not slow:
        a(f"s_mov_b32 {T0}, {hx(2.0**-60)}\ns_mov_b32 {T1}, {hx(2.0**60)}\ns_mov_b32 {T2}, {hx(2.0**120)}\ns_mov_b64 {M0_}, 0")
    for t, Q in enumerate((QA, QB)):
        if slow:
            a.wait_lg(f"m{t}3")
            for k in range(4):
                a(f"v_mov_b32 v{212+k}, v{Q[3*k+2]+1}\nv_mov_b32 v{216+k}, v{Q[3*k+2]+1}")
            for k in range(4):
                a(f"v_permlane32_swap_b32 v{212+k}, v{216+k}")
            a("v_max3_f32 v212, v216, v217, v218\nv_max_f32 v212, v212, v219")
            for k in range(4):
                a(f"v_sub_f32 v{216+k}, v{216+k}, v212")
            for k in range(4):
                a(f"v_exp_f32 v{216+k}, v{216+k}")
            for k in range(4):
                for c in range(3):
                    for e in range(4):
                        d, s = Q[c] + e, Q[3 * k + c] + e
                        a(f"v_mul_f32 v{d}, v{216}, v{s}" if k == 0 else f"v_fmac_f32 v{d}, v{216+k}, v{s}")
        else:
            for k in range(1, 4):
                a.wait_lg(f"m{t}{k}")
                for c in range(3):
                    for e in (0, 2):
                        a(f"v_pk_add_f32 {vr(Q[c]+e,2)}, {vr(Q[c]+e,2)}, {vr(Q[3*k+c]+e,2)}")
        o = [Q[c] + e for c in range(3) for e in range(4)]
        a(f"v_mov_b32 v212, v{o[8]}\nv_mov_b32 v213, v{o[8]}\nv_permlane32_swap_b32 v212, v213\nv_rcp_f32 v214, v213")
        if not slow:
            a(f"v_add_f32 v212, |v{o[0]}|, |v{o[1]}|")
            for e in range(2, 12):
                a(f"v_add_f32 v212, v212, |v{o[e]}|")
            a(f"""v_cmp_nle_f32 vcc, {T0}, v213
s_or_b64 {M0_}, {M0_}, vcc
v_cmp_nge_f32 vcc, {T1}, v213
s_or_b64 {M0_}, {M0_}, vcc
v_cmp_ngt_f32 vcc, {T2}, v212
s_or_b64 {M0_}, {M0_}, vcc""")
        for c in range(3):
            for e in (0, 2):
                a(f"v_pk_mul_f32 {vr(Q[c]+e,2)}, {vr(Q[c]+e,2)}, v[214:215] op_sel_hi:[1,0]")
        for q in range(4):
            a(f"v_cvt_pk_bf16_f32 v{Q[3]+q}, v{o[2*q]}, v{o[2*q+1]}")
        for q in range(2):
            a(f"v_cvt_pk_bf16_f32 v{220+2*t+q}, v{o[8+2*q]}, v{o[9+2*q]}")
        a.bst(vr(Q[3]), "v3", SRD_WS, 512 * t, "ost", "sc1")
    a.bst("v[220:223]", "v4", SRD_WS, 0, "ost", "sc1")


def slow_attention(a):
    lp = a.label("slow")
    a(f"""v_and_b32 v13, 31, v0
v_lshrrev_b32 v14, 5, v0
v_lshlrev_b32 v14, 9, v14
v_lshl_add_u32 v14, v13, 4, v14
v_add_u32 v5, {QI}, v14
v_lshlrev_b32 v13, 3, v13
v_add_u32 v6, {QI+1024}, v13
s_mul_i32 {T4}, {W}, 3072
v_add_u32 v7, {T4}, v1
s_mov_b32 {T3}, 0
s_mov_b32 vcc_lo, 0
s_mov_b32 vcc_hi, -1
s_mov_b64 {M1_}, vcc""")
    a(f"{lp}:")
    a("ds_read_b128 v[88:91], v5\nds_read_b64 v[92:93], v6")
    a("v_mov_b32 v72, 0xff800000")
    a.wait_lg()
    for kt in range(16):
        a(f"v_mfma_f32_32x32x16_bf16 v[16:31], {ar(14*kt)}, v[88:91], 0")
        a(f"v_mfma_f32_32x32x8_bf16 v[16:31], {ar(14*kt+4,2)}, v[92:93], v[16:31]")
        for i in range(8):
            a(f"v_max3_f32 v72, v72, v{16+2*i}, v{17+2*i}")
    a("v_mov_b32 v73, v72\nv_permlane32_swap_b32 v72, v73\nv_max_f32 v72, v72, v73")
    for i in range(16):
        a(f"v_sub_f32 v{32+i}, 0, v72")
    for kt in range(16):
        a(f"v_mfma_f32_32x32x16_bf16 v[16:31], {ar(14*kt)}, v[88:91], v[32:47]")
        a(f"v_mfma_f32_32x32x8_bf16 v[16:31], {ar(14*kt+4,2)}, v[92:93], v[16:31]")
        for i in range(16):
            a(f"v_exp_f32 v{16+i}, v{16+i}")
        for i in range(8):
            a(f"v_cvt_pk_bf16_f32 v{48+i}, v{16+2*i}, v{17+2*i}")
        a(f"v_mfma_f32_32x32x16_bf16 v[56:71], {ar(14*kt+6)}, v[48:51], {'v[56:71]' if kt else 0}")
        a(f"v_mfma_f32_32x32x16_bf16 v[56:71], {ar(14*kt+10)}, v[52:55], v[56:71]")
    a(f"v_cndmask_b32 v65, v65, v72, {M1_}")
    for k in range(3):
        a(f"ds_write_b128 v7, {vr(56+4*k)} offset:{1024*k}")
    a(f"""v_add_u32 v5, 1280, v5
v_add_u32 v6, 1280, v6
v_add_u32 v7, 12288, v7
s_add_u32 {T3}, {T3}, 1
s_cmp_lt_u32 {T3}, 8
s_cbranch_scc1 {lp}""")
    a.wait_lg()
    a("s_barrier")
    merge(a, True)


def merge_and_vote(a):
    merge_addresses(a)
    a.wait_lg()
    a("s_barrier")
    merge(a, False)
    nv, ok, slow = a.label("novote"), a.label("voteok"), a.label("slowpath")
    a(f"""v_mov_b32 v13, {VOTE}
v_mov_b32 v14, 1
s_cmp_eq_u64 {M0_}, 0
s_cbranch_scc1 {nv}
ds_write_b32 v13, v14
s_waitcnt lgkmcnt(0)
{nv}:
s_barrier
ds_read_b32 v14, v13""")
    group_flag_addr(a, WS_FO, 5, "pub")
    a.wait_lg()
    a(f"v_cmp_ne_u32 vcc, 0, v14\ns_cbranch_vccnz {slow}")
    a(f"{ok}:")
    one_lane(a, True)
    a.flag("v5", 14)
    one_lane(a, False)
    a.stamp("oflag")
    return slow, ok


def emit_slow(a, slow, ok):
    a(f"{slow}:")
    a.vm, a.lg = [], []
    a.forget()
    a("s_waitcnt vmcnt(0)")
    slow_attention(a)
    group_flag_addr(a, WS_FO, 5, "pub")
    a(f"s_branch {ok}")


def w_loads(a, lo, hi):
    for ks in range(lo, hi):
        for i in range(3):
            a.bld(ar(12 * ks + 4 * i), "v11", SRD_WS, 1024 * (3 * ks + i), f"w{ks}", "sc1")


ACC2 = (204, 224)


def wo_phase(a):
    cfg = a.cfg
    a(f"""s_mul_i32 {T4}, {J}, 12
s_mul_i32 {T5}, {W}, 3
s_add_u32 {T4}, {T4}, {T5}
s_lshl_b32 {T4}, {T4}, 8
s_add_u32 {T4}, {T4}, {WS_UB}
v_lshl_add_u32 v13, v0, 2, {T4}
s_lshl_b32 {T4}, {J}, 2
s_add_u32 {T4}, {T4}, {W}
s_mul_i32 {T4}, {T4}, 122880
s_add_u32 {T4}, {T4}, {WS_WGU}
v_add_u32 v11, {T4}, v1""")
    for kq in range(10):
        for i in range(3):
            a.bld(f"v{16+3*kq+i}", "v13", SRD_WS, UB_STRIDE * kq + 256 * i, "ub", "sc1", "dword")
    w_loads(a, 0, cfg["w1"])
    ksplit_addresses(a, 15360, 2, 4)
    group_flag_addr(a, WS_FO, 7, "sub")
    a.wait_vm("ub")
    for i in range(3):
        a(f"v_add_f32 v{8+i}, v{16+i}, v{19+i}")
        for kq in range(2, 10):
            a(f"v_add_f32 v{8+i}, v{8+i}, v{16+3*kq+i}")
    a.poll("v7", 14)
    a.stamp("oseen")
    a(f"""s_mul_i32 {T4}, {G}, 81920
s_mul_i32 {T5}, {W}, 5120
s_add_u32 {T4}, {T4}, {T5}
s_add_u32 {T4}, {T4}, {WS_O}
v_add_u32 v7, {T4}, v1""")
    tile_loads(a, 5, 0, 20, lambda f: 16 + 4 * f, "v7", 20480, "o")
    w_loads(a, cfg["w1"], cfg["w2"])
    a(f"""s_mul_i32 {T4}, {G}, 81920
s_mul_i32 {T5}, {J}, 10240
s_add_u32 {T4}, {T4}, {T5}
s_lshr_b32 {T5}, {W}, 1
s_lshl_b32 {T5}, {T5}, 10
s_add_u32 {T4}, {T4}, {T5}
s_and_b32 {T5}, {W}, 1
s_lshl_b32 {T5}, {T5}, 8
s_add_u32 {T4}, {T4}, {T5}
s_add_u32 {T4}, {T4}, {WS_Z}
v_and_b32 v13, 15, v0
v_lshl_add_u32 v3, v13, 4, {T4}
v_lshrrev_b32 v14, 5, v0
v_lshl_add_u32 v3, v14, 9, v3
v_bfe_u32 v15, v0, 4, 1
v_lshl_add_u32 v3, v15, 3, v3
s_lshl_b32 {T4}, {P}, 9
s_lshl_b32 {T5}, {W}, 7
s_add_u32 {T4}, {T4}, {T5}
s_add_u32 {T4}, {T4}, {WS_ST}
v_lshl_add_u32 v12, v13, 3, {T4}
v_lshl_add_u32 v12, v14, 2, v12
v_lshrrev_b32 v13, 4, v0
v_lshlrev_b32 v13, 4, v13
v_add_u32 v13, {MSH}, v13""")
    ksplit(a, 5, lambda s, nt: vr(WO_ + 20 * s + 4 * nt), lambda f: 16 + 4 * f, "o", ACC2, 2)
    ga, c2, acc = 104, 124, ACC2[1]
    for nt in range(5):
        a(f"ds_read_b128 {vr(ga+4*nt)}, v13 offset:{64*nt}")
    for nt in range(5):
        a(f"ds_read_b128 {vr(c2+4*nt)}, v13 offset:{320+64*nt}")
    for k in range(10):
        a(f"v_lshlrev_b32 v{144+2*k}, 16, v{XR+k}\nv_and_b32 v{145+2*k}, 0xffff0000, v{XR+k}")
    ksplit_reduce(a, acc, 4, 16)
    for k in range(10):
        a(f"v_pk_fma_f32 {vr(acc+2*k,2)}, {vr(acc+2*k,2)}, {vr(ga+2*k,2)}, {vr(144+2*k,2)}")
    for k in range(10):
        a(f"v_cvt_pk_bf16_f32 v{XR+k}, v{acc+2*k}, v{acc+1+2*k}")
    for k in range(10):
        a(f"v_lshlrev_b32 v{acc+2*k}, 16, v{XR+k}\nv_and_b32 v{acc+1+2*k}, 0xffff0000, v{XR+k}")
    for nt in range(5):
        for q in range(2):
            k = 2 * nt + q
            a(f"v_pk_mul_f32 {vr(c2+2*k,2)}, {vr(c2+2*k,2)}, {vr(acc+2*k,2)}")
        a(f"v_cvt_pk_bf16_f32 v{16+2*nt}, v{c2+4*nt}, v{c2+4*nt+1}\nv_cvt_pk_bf16_f32 v{17+2*nt}, v{c2+4*nt+2}, v{c2+4*nt+3}")
        a.bst(vr(16 + 2 * nt, 2), "v3", SRD_WS, 2048 * nt, "zst", "sc1", "dwordx2")
    a(f"v_pk_add_f32 v[28:29], {vr(acc,2)}, {vr(acc+2,2)}\nv_pk_mul_f32 v[30:31], {vr(acc,2)}, {vr(acc,2)}")
    a(f"v_pk_fma_f32 v[30:31], {vr(acc+2,2)}, {vr(acc+2,2)}, v[30:31]")
    for k in range(2, 10):
        a(f"v_pk_add_f32 v[28:29], v[28:29], {vr(acc+2*k,2)}\nv_pk_fma_f32 v[30:31], {vr(acc+2*k,2)}, {vr(acc+2*k,2)}, v[30:31]")
    a("""v_add_f32 v28, v28, v29
v_add_f32 v29, v30, v31
v_permlane32_swap_b32 v28, v29
v_add_f32 v28, v28, v29
v_mov_b32 v29, v28
v_permlane16_swap_b32 v28, v29
v_add_f32 v28, v28, v29""")
    a.bst("v28", "v12", SRD_WS, 0, "zst", "sc1", "dword")
    group_flag_addr(a, WS_FZ, 5, "pub")
    one_lane(a, True)
    a.flag("v5", 14)
    one_lane(a, False)
    a.stamp("zflag")
    w_loads(a, cfg["w2"], 20)


def split3(a, v, kind, dst):
    out = [f"v_cvt_pk_bf16_f32 v{dst+2}, v{v}, v{v}",
           f"v_and_b32 v{dst+3}, 0xffff0000, v{dst+2}",
           f"v_sub_f32 v{dst+3}, v{v}, v{dst+3}"]
    if kind == "A":
        out += [f"v_cvt_pk_bf16_f32 v{dst}, v{v}, v{dst+3}", f"v_and_b32 v{dst+1}, 0xffff, v{dst+2}"]
    else:
        out += [f"v_mov_b32 v{dst}, v{dst+2}", f"v_cvt_pk_bf16_f32 v{dst+1}, v{dst+3}, 0"]
    out += [f"v_mov_b32 v{dst+2}, 0", f"v_mov_b32 v{dst+3}, 0"]
    return out


def gu_phase(a):
    group_flag_addr(a, WS_FZ, 7, "sub")
    a(f"""s_mul_i32 {T4}, {G}, 81920
s_mul_i32 {T5}, {W}, 20480
s_add_u32 {T4}, {T4}, {T5}
s_add_u32 {T4}, {T4}, {WS_Z}
v_add_u32 v3, {T4}, v1
s_add_u32 {T7}, {T5}, {ZL}
v_add_u32 v12, {ZL}, v1
v_add_u32 v13, 40960, v12
s_lshl_b32 {T4}, {G}, 12
s_add_u32 {T4}, {T4}, {WS_ST}
v_and_b32 v14, 31, v0
v_lshl_add_u32 v6, v14, 3, {T4}
v_lshrrev_b32 v14, 5, v0
v_lshl_add_u32 v6, v14, 11, v6
s_mul_i32 {T4}, {J}, 48
s_mul_i32 {T5}, {W}, 12
s_add_u32 {T4}, {T4}, {T5}
s_mul_i32 {T4}, {T4}, 5120
s_add_u32 {T4}, {T4}, {WS_WD}
v_add_u32 v2, {T4}, v1""")
    a.poll("v7", 14)
    a.stamp("zseen")
    for n in range(20):
        a.dma("v3", SRD_WS, 1024 * n, T7, 1024 * n, "z", "sc1")
    a.wait_vm()
    a("s_barrier")
    for th in range(2):
        for q in range(4):
            a.bld(vr(128 + 8 * th + 2 * q, 2), "v6", SRD_WS, 512 * q + 256 * th, "st", "sc1", "dwordx2")
    Z = (112, 120)
    def zread(ks, th):
        base, off = ("v12", 2048 * ks) if ks < 20 else ("v13", 2048 * (ks - 20))
        a(f"ds_read_b128 {vr(Z[ks % 2] + 4*th)}, {base} offset:{off + 1024*th}", f"z{ks}")
    zread(0, 0)
    zread(0, 1)
    fill = [lambda: a.wait_vm("st")]
    for th in range(2):
        b = 128 + 8 * th
        fill += [f"v_pk_add_f32 {vr(b,2)}, {vr(b,2)}, {vr(b+2,2)}", f"v_pk_add_f32 {vr(b+4,2)}, {vr(b+4,2)}, {vr(b+6,2)}",
                 f"v_pk_add_f32 {vr(b,2)}, {vr(b,2)}, {vr(b+4,2)}", f"v_mov_b32 v{b+2}, v{b}", f"v_mov_b32 v{b+3}, v{b+1}",
                 f"v_permlane32_swap_b32 v{b}, v{b+2}", f"v_permlane32_swap_b32 v{b+1}, v{b+3}",
                 f"v_pk_add_f32 {vr(b,2)}, {vr(b,2)}, {vr(b+2,2)}",
                 f"v_mul_f32 v{b}, {hx(1/640)}, v{b}", f"v_mul_f32 v{b+1}, {hx(1/640)}, v{b+1}",
                 f"v_fma_f32 v{b+1}, -v{b}, v{b}, v{b+1}", f"v_max_f32 v{b+1}, 0, v{b+1}", f"v_add_f32 v{b+1}, {hx(1e-5)}, v{b+1}",
                 f"v_rsq_f32 v{b+2}, v{b+1}", f"v_sub_f32 v{b}, 0, v{b}", f"v_mul_f32 v{b+3}, v{b+1}, v{b+2}",
                 f"v_cndmask_b32 v{b+3}, v{b}, v{b+3}, {M1_}"]
        fill += split3(a, b + 3, "B", 144 + 4 * th)
        c1g = -2 * 0.7978845608028654 * LOG2E
        fill += [f"v_mul_f32 v{b+4}, {hx(c1g)}, v{b+2}", f"v_mul_f32 v{b+5}, v{b+2}, v{b+2}",
                 f"v_mul_f32 v{b+5}, v{b+5}, v{b+4}", f"v_mul_f32 v{b+6}, {hx(0.044715)}, v{b+5}",
                 f"v_mov_b32 v{b}, v{b+1}"]
    for i in range(3):
        fill += split3(a, 8 + i, "A", 152 + 4 * i)
    a(f"s_mov_b32 s92, 0\ns_mov_b32 s93, -1")
    def filler(n):
        for _ in range(n):
            if fill:
                x = fill.pop(0)
                x() if callable(x) else a(x)
    def ld(ks, i):
        if ks < 20:
            a.bld(ar(12 * ks + 4 * i), "v11", SRD_WS, 1024 * (3 * (ks + 20) + i), f"w{ks+20}", "sc1")
        else:
            a.bld(ar(12 * (ks - 20) + 4 * i), "v2", SRD_WS, 1024 * (3 * (ks - 20) + i), "wd", "sc1")
    for ks in range(40):
        if ks >= 20:
            a.wait_vm(f"w{ks}")
        a.wait_lg(f"z{ks}")
        for i in range(3):
            for th in range(2):
                c = vr(16 + 32 * i + 16 * th, 16)
                a(f"v_mfma_f32_32x32x16_bf16 {c}, {ar(12*(ks % 20) + 4*i)}, {vr(Z[ks % 2] + 4*th)}, {c if ks else 0}")
                if i == 0 and ks < 39:
                    zread(ks + 1, th)
                if th == 1:
                    ld(ks, i)
                elif i and ks >= 2:
                    filler(3)
    filler(1000)
    for i in range(3):
        for th in range(2):
            c = vr(16 + 32 * i + 16 * th, 16)
            a(f"v_mfma_f32_32x32x16_bf16 {c}, {vr(152+4*i)}, {vr(144+4*th)}, {c}")
    a.stamp("gumm")
    a(f"""s_mul_i32 {T4}, {G}, 196608
s_mul_i32 {T5}, {J}, 6144
s_add_u32 {T4}, {T4}, {T5}
s_mul_i32 {T5}, {W}, 1536
s_add_u32 {T4}, {T4}, {T5}
s_add_u32 {T4}, {T4}, {WS_H}
v_and_b32 v13, 15, v0
v_lshl_add_u32 v3, v13, 4, {T4}
v_bfe_u32 v13, v0, 4, 1
v_mul_u32_u24 v13, 49152, v13
v_lshrrev_b32 v14, 5, v0
v_lshlrev_b32 v14, 8, v14
v_add3_u32 v3, v3, v13, v14""")
    for i in range(3):
        for th in range(2):
            c, b, t = 16 + 32 * i + 16 * th, 128 + 8 * th, 164 + 8 * ((2 * i + th) % 2)
            for q in range(4):
                a(f"v_pk_mul_f32 {vr(t+2*q,2)}, {vr(c+2*q,2)}, {vr(c+2*q,2)}")
            for q in range(4):
                a(f"v_pk_fma_f32 {vr(t+2*q,2)}, {vr(t+2*q,2)}, {vr(b+6,2)}, {vr(b+4,2)} op_sel_hi:[1,0,0]")
            for q in range(4):
                a(f"v_pk_mul_f32 {vr(t+2*q,2)}, {vr(t+2*q,2)}, {vr(c+2*q,2)}")
            for e in range(8):
                a(f"v_exp_f32 v{t+e}, v{t+e}")
            for q in range(4):
                a(f"v_pk_mul_f32 {vr(c+2*q,2)}, {vr(c+2*q,2)}, {vr(c+8+2*q,2)}")
            for q in range(4):
                a(f"v_pk_fma_f32 {vr(t+2*q,2)}, {vr(t+2*q,2)}, {vr(b,2)}, {vr(b,2)} op_sel_hi:[1,0,0]")
            for e in range(8):
                a(f"v_rcp_f32 v{t+e}, v{t+e}")
            for q in range(4):
                a(f"v_pk_mul_f32 {vr(c+2*q,2)}, {vr(c+2*q,2)}, {vr(t+2*q,2)}")
            for q in range(4):
                a(f"v_cvt_pk_bf16_f32 v{c+8+q}, v{c+2*q}, v{c+2*q+1}")
            a.room(1)
            a.bst(vr(c + 8), "v3", SRD_WS, 98304 * th + 512 * i, "hst2", "sc1")
    group_flag_addr(a, WS_FH, 5, "pub")
    one_lane(a, True)
    a.flag("v5", 14)
    one_lane(a, False)
    a.stamp("hflag")


def down_phase(a):
    group_flag_addr(a, WS_FH, 7, "sub")
    a(f"""s_mul_i32 {T4}, {G}, 196608
s_mul_i32 {T5}, {W}, 12288
s_add_u32 {T4}, {T4}, {T5}
s_add_u32 {T4}, {T4}, {WS_H}
v_add_u32 v3, {T4}, v1
s_lshl_b32 {T4}, {G}, 2
s_add_u32 {T4}, {T4}, {W}
s_mul_i32 {T4}, {T4}, {16*1280}
s_mul_i32 {T5}, {J}, 160
s_add_u32 {T4}, {T4}, {T5}
v_and_b32 v13, 15, v0
v_mul_u32_u24 v13, 1280, v13
v_lshrrev_b32 v14, 4, v0
v_lshlrev_b32 v15, 3, v14
v_add3_u32 v12, v13, v15, {T4}
v_lshlrev_b32 v13, 4, v14
v_add_u32 v13, {MSH}, v13""")
    ksplit_addresses(a, 15360, 2, 4)
    for nt in range(5):
        a(f"ds_read_b128 {vr(160+4*nt)}, v13 offset:{640+64*nt}")
    for k in range(10):
        a(f"v_lshlrev_b32 v{180+2*k}, 16, v{XR+k}\nv_and_b32 v{181+2*k}, 0xffff0000, v{XR+k}")
    a.poll("v7", 14)
    a.stamp("hseen2")
    dst = lambda f: 16 + 4 * (f % 36)
    tile_loads(a, 12, 0, 36, dst, "v3", 49152, "h")
    def after(sg, s):
        if sg == 0:
            tile_loads(a, 12, 36 + s, 1, dst, "v3", 49152, "h")
    ksplit(a, 12, lambda s, nt: ar(20 * s + 4 * nt), dst, "h", ACC2, 2, after)
    acc = ACC2[1]
    ksplit_reduce(a, acc, 4, 16)
    for k in range(10):
        a(f"v_pk_fma_f32 {vr(acc+2*k,2)}, {vr(acc+2*k,2)}, {vr(160+2*k,2)}, {vr(180+2*k,2)}")
    for nt in range(5):
        a(f"v_cvt_pk_bf16_f32 v{16+2*nt}, v{acc+4*nt}, v{acc+4*nt+1}\nv_cvt_pk_bf16_f32 v{17+2*nt}, v{acc+4*nt+2}, v{acc+4*nt+3}")
        a.bst(vr(16 + 2 * nt, 2), "v12", SRD_OUT, 32 * nt, "out", w="dwordx2")


def epilogue(a):
    lskip = a.label("notag")
    a(f"""s_add_u32 {T4}, {P}, {W}
s_cmp_lg_u32 {T4}, 0
s_cbranch_scc1 {lskip}
v_mov_b32 v13, {WS_NONCE}
v_mov_b32 v14, {CTR}""")
    one_lane(a, True)
    a(f"buffer_store_dword v14, v13, {SRD_WS}, 0 offen sc1")
    one_lane(a, False)
    a(f"{lskip}:")
    if a.cfg.get("stamps"):
        a.wait_vm()
        a.stamp("end")
        a(f"""s_waitcnt lgkmcnt(0)
s_lshl_b32 {T4}, {P}, 2
s_add_u32 {T4}, {T4}, {W}
s_lshl_b32 {T4}, {T4}, 7
s_add_u32 {T4}, {T4}, {WS_STAMP}
v_mov_b32 v13, {T4}
v_mov_b32 v14, s100""")
        one_lane(a, True)
        a(f"buffer_store_dword v14, v13, {SRD_WS}, 0 offen")
        for k in range(a.nstamp):
            a(f"v_mov_b32 v{16+k}, s{4+2*k}\nbuffer_store_dword v{16+k}, v13, {SRD_WS}, 0 offen offset:{4+4*k}")
        one_lane(a, False)
    a("s_endpgm")


def build(cfg):
    a = K(cfg)
    want = cfg.get("stamps")
    if want:
        orig = a.stamp
        a.stamp = lambda name: orig(name) if name in want else None
    prologue(a)
    mod_unit(a)
    mod_addresses(a)
    weight_frags(a)
    ln1(a)
    mod_loads(a)
    wq_dma(a, cfg["wq1"], cfg["wq2"])
    wq_frags(a, 0, cfg["wqf1"])
    mod_finish(a)
    h_and_kv(a)
    kv_flag_and_q(a)
    last_v = kv_loads(a)
    q_finish(a)
    attention(a, last_v)
    slow, ok = merge_and_vote(a)
    wo_phase(a)
    gu_phase(a)
    down_phase(a)
    epilogue(a)
    emit_slow(a, slow, ok)
    a("L_end:\ns_endpgm")
    nn = a.finalize()
    head = open("adaLN_cond__grouped_kv_mqa__glu_gated_geglu__prompt.s.ref").read().split("; Override launch")[0]
    text = head + f"""; One persistent launch: 256 workgroups (32 groups of 8), generated by gen/kernel.py.
; @launch grid=(256,1,1) block=(256,1,1) lds={LDS_BYTES}
.amdgcn_target "amdgcn-amd-amdhsa--gfx950"
.text
.globl {NAME}
.p2align 8
.type {NAME},@function
{NAME}:
""" + a.text() + f""".section .rodata,"a"
.p2align 6
.amdhsa_kernel {NAME}
  .amdhsa_next_free_vgpr 512
  .amdhsa_next_free_sgpr 102
  .amdhsa_accum_offset 256
  .amdhsa_group_segment_fixed_size 0
  .amdhsa_kernarg_size 112
  .amdhsa_user_sgpr_count 2
  .amdhsa_user_sgpr_kernarg_segment_ptr 1
  .amdhsa_system_sgpr_workgroup_id_x 1
  .amdhsa_float_denorm_mode_32 3
.end_amdhsa_kernel
"""
    return text, nn, len(a.ins)


DEFAULT = dict(wq1=10, wq2=25, wqf1=0, w1=6, w2=14)

if __name__ == "__main__":
    import json
    cfg = dict(DEFAULT)
    out = "adaLN_cond__grouped_kv_mqa__glu_gated_geglu__prompt.s"
    for arg in sys.argv[1:]:
        k, v = arg.split("=", 1)
        if k == "out":
            out = v
        elif k == "stamps":
            cfg[k] = v.split(",")
        else:
            cfg[k] = int(v)
    text, nn, n = build(cfg)
    open(out, "w").write(text)
    if cfg.get("stamp_names"):
        open(out + ".stamps", "w").write(",".join(cfg["stamp_names"]))
    print(f"wrote {out}: {n} instructions, {nn} inserted wait states")
```

```python
from mblib import *
def stampk(name, body, vgpr=128, sgpr=96):
    accum = min(256, (vgpr + 3) // 4 * 4)
    s = f"""
.text
.globl {name}
.p2align 8
.type {name},@function
{name}:
    s_memrealtime s[22:23]
    s_load_dwordx2 s[4:5], s[0:1], 0
    s_load_dwordx2 s[6:7], s[0:1], 8
    s_waitcnt lgkmcnt(0)
{body}
    s_waitcnt vmcnt(0) lgkmcnt(0)
    s_barrier
    s_memrealtime s[26:27]
    s_waitcnt lgkmcnt(0)
    v_cmp_eq_u32 vcc, 0, v0
    s_and_saveexec_b64 s[28:29], vcc
    s_cbranch_execz L_{name}_done
    s_lshl_b32 s30, s2, 4
    v_mov_b32 v2, s30
    v_mov_b32 v4, s22
    v_mov_b32 v5, s23
    v_mov_b32 v6, s26
    v_mov_b32 v7, s27
    global_store_dwordx4 v2, v[4:7], s[6:7]
    s_waitcnt vmcnt(0)
L_{name}_done:
    s_endpgm
.section .rodata,"a"
.p2align 6
.amdhsa_kernel {name}
  .amdhsa_next_free_vgpr {vgpr}
  .amdhsa_next_free_sgpr {sgpr}
  .amdhsa_accum_offset {accum}
  .amdhsa_group_segment_fixed_size 0
  .amdhsa_kernarg_size 16
  .amdhsa_user_sgpr_count 2
  .amdhsa_user_sgpr_kernarg_segment_ptr 1
  .amdhsa_system_sgpr_workgroup_id_x 1
  .amdhsa_float_denorm_mode_32 3
.end_amdhsa_kernel
"""
    meta = f"""  - .name: {name}
    .symbol: {name}.kd
    .kernarg_segment_size: 16
    .kernarg_segment_align: 8
    .group_segment_fixed_size: 0
    .private_segment_fixed_size: 0
    .wavefront_size: 64
    .sgpr_count: {sgpr}
    .vgpr_count: {vgpr}
    .max_flat_workgroup_size: 1024
    .args:
      - {{.name: kernargs, .size: 16, .offset: 0, .value_kind: by_value}}
"""
    return s, meta
if __name__ == "__main__":
    ks = []
    ks.append(stampk("empty", ""))
    ks.append(stampk("empty256", "", vgpr=256))
    ks.append(stampk("empty512", "", vgpr=512))
    spin = """
    s_mov_b32 s3, 3000
L_spin:
    s_sleep 2
    s_sub_u32 s3, s3, 1
    s_cmp_lg_u32 s3, 0
    s_cbranch_scc1 L_spin
"""
    ks.append(stampk("spin", spin))
    st = """
    s_mul_i32 s8, s2, 16384
    s_add_u32 s8, s8, 0x1000000
    v_lshlrev_b32 v8, 4, v0
    v_add_u32 v8, s8, v8
    v_mov_b32 v12, 1.0
    v_mov_b32 v13, 1.0
    v_mov_b32 v14, 1.0
    v_mov_b32 v15, 1.0
    global_store_dwordx4 v8, v[12:15], s[4:5]
    global_store_dwordx4 v8, v[12:15], s[4:5] offset:4095
"""
    st = st.replace("offset:4095", "offset:0")
    st += "    v_add_u32 v8, 4096, v8\n    global_store_dwordx4 v8, v[12:15], s[4:5]\n    v_add_u32 v8, 4096, v8\n    global_store_dwordx4 v8, v[12:15], s[4:5]\n"
    ks.append(stampk("store12k", st))
    build("mb3", ks)
```

```python
import subprocess

def kernel(name, body_init, body_loop, iters, vgpr=256, accum=None, sgpr=96, post=""):
    accum = accum or min(256, (vgpr + 3) // 4 * 4)
    s = f"""
.text
.globl {name}
.p2align 8
.type {name},@function
{name}:
    s_load_dwordx2 s[4:5], s[0:1], 0
    s_load_dwordx2 s[6:7], s[0:1], 8
    s_waitcnt lgkmcnt(0)
{body_init}
    s_barrier
    s_memtime s[20:21]
    s_memrealtime s[22:23]
    s_waitcnt lgkmcnt(0)
    s_mov_b32 s3, {iters}
.p2align 6
L_{name}_loop:
{body_loop}
    s_sub_u32 s3, s3, 1
    s_cmp_lg_u32 s3, 0
    s_cbranch_scc1 L_{name}_loop
{post}
    s_waitcnt vmcnt(0) lgkmcnt(0)
    s_barrier
    s_memtime s[24:25]
    s_memrealtime s[26:27]
    s_waitcnt lgkmcnt(0)
    s_sub_u32 s24, s24, s20
    s_subb_u32 s25, s25, s21
    s_sub_u32 s26, s26, s22
    s_subb_u32 s27, s27, s23
    v_cmp_eq_u32 vcc, 0, v0
    s_and_saveexec_b64 s[28:29], vcc
    s_cbranch_execz L_{name}_done
    s_lshl_b32 s30, s2, 4
    v_mov_b32 v2, s30
    v_mov_b32 v4, s24
    v_mov_b32 v5, s25
    v_mov_b32 v6, s26
    v_mov_b32 v7, s27
    global_store_dwordx4 v2, v[4:7], s[6:7]
    s_waitcnt vmcnt(0)
L_{name}_done:
    s_endpgm
.section .rodata,"a"
.p2align 6
.amdhsa_kernel {name}
  .amdhsa_next_free_vgpr {vgpr}
  .amdhsa_next_free_sgpr {sgpr}
  .amdhsa_accum_offset {accum}
  .amdhsa_group_segment_fixed_size 0
  .amdhsa_kernarg_size 16
  .amdhsa_user_sgpr_count 2
  .amdhsa_user_sgpr_kernarg_segment_ptr 1
  .amdhsa_system_sgpr_workgroup_id_x 1
  .amdhsa_float_denorm_mode_32 3
.end_amdhsa_kernel
"""
    meta = f"""  - .name: {name}
    .symbol: {name}.kd
    .kernarg_segment_size: 16
    .kernarg_segment_align: 8
    .group_segment_fixed_size: 0
    .private_segment_fixed_size: 0
    .wavefront_size: 64
    .sgpr_count: {sgpr}
    .vgpr_count: {vgpr}
    .max_flat_workgroup_size: 1024
    .args:
      - {{.name: kernargs, .size: 16, .offset: 0, .value_kind: by_value}}
"""
    return s, meta

def build(fname, kernels):
    src = '.amdgcn_target "amdgcn-amd-amdhsa--gfx950"\n'
    metas = ""
    for s, m in kernels:
        src += s
        metas += m
    src += "\n.amdgpu_metadata\n---\namdhsa.version: [1, 2]\namdhsa.kernels:\n" + metas + "...\n.end_amdgpu_metadata\n"
    open(fname + ".s", "w").write(src)
    r = subprocess.run(["clang", "-x", "assembler", "-target", "amdgcn-amd-amdhsa", "-mcpu=gfx950", fname + ".s", "-o", fname + ".co"], capture_output=True, text=True)
    if r.returncode:
        print(r.stderr[:1500])
        raise SystemExit(1)
    print("built", fname + ".co")
```

```python
from mblib import *
from mb3 import stampk
def st(name, n, flag, spin, pre=False):
    L = []; A = L.append
    A(f"s_mul_i32 s8, s2, {n*4096}"); A("s_add_u32 s8, s8, 0x1000000")
    A("v_lshlrev_b32 v8, 4, v0"); A("v_add_u32 v8, s8, v8")
    for k in range(4): A(f"v_mov_b32 v{12+k}, 1.0")
    if pre:
        A("v_mov_b32 v9, v8")
        for i in range(n):
            A("global_load_dwordx4 v[16:19], v9, s[4:5]"); A("v_add_u32 v9, 4096, v9")
        A("s_waitcnt vmcnt(0)")
    for i in range(n):
        A(f"global_store_dwordx4 v8, v[12:15], s[4:5] {flag}"); A("v_add_u32 v8, 4096, v8")
    A("s_waitcnt vmcnt(0)")
    if spin:
        A(f"s_mov_b32 s3, {spin}"); A(f"L_{name}_s:"); A("s_sleep 2"); A("s_sub_u32 s3, s3, 1"); A("s_cmp_lg_u32 s3, 0"); A(f"s_cbranch_scc1 L_{name}_s")
    return stampk(name, "\n".join("    " + x if not x.endswith(":") else x for x in L))
ks = [stampk("empty", "")]
spin = """
    s_mov_b32 s3, 3000
L_spin:
    s_sleep 2
    s_sub_u32 s3, s3, 1
    s_cmp_lg_u32 s3, 0
    s_cbranch_scc1 L_spin
"""
ks.append(stampk("spin", spin))
ks.append(st("pl48", 12, "", 0)); ks.append(st("pl48s", 12, "", 150)); ks.append(st("sc48", 12, "sc1", 0)); ks.append(st("sc48s", 12, "sc1", 150))
ks.append(st("prepl48", 12, "", 0, True)); ks.append(st("prepl48s", 12, "", 150, True)); ks.append(st("nt48s", 12, "nt", 150, True))
build("mb24", ks)
```
